```python
import torch

def _softmax(x, axis=-1):
    return torch.softmax(x, dim=axis)
def _gelu(x):
    return torch.nn.functional.gelu(x, approximate="tanh")
def _silu(x):
    return torch.nn.functional.silu(x)
def _sigmoid(x):
    return torch.sigmoid(x)
def _layernorm(x, axis=-1, eps=1e-5):
    m = x.mean(dim=axis, keepdim=True)
    v = x.var(dim=axis, keepdim=True, unbiased=False)
    return (x - m) / torch.sqrt(v + eps)
def _scatter_add(tgt, idx, src, axis=0):
    return tgt.clone().index_add_(axis, idx, src)
def _segment_sum(src, seg, n):
    out = torch.zeros((n,) + src.shape[1:], dtype=src.dtype)
    return out.index_add_(0, seg, src)
def _pad(x, pw):
    flat = tuple(v for pair in reversed(pw) for v in pair)
    return torch.nn.functional.pad(x, flat)

kernel_name = 'recurrent_scan__ssm_conv_h3__mixer_s_mlp__prompt'

def setup_inputs():

    _w = (lambda a: (lambda t: t.to(torch.bfloat16) if t.is_floating_point() else t)(torch.as_tensor(a)))
    def _A_setup():
        B, S, D = 1, 2048, 1024
        ks = 4
        return {
            "q": _w((lambda *s: torch.randn(*s, dtype=torch.bfloat16) * 0.05)(B, S, D)),
            "k": _w((lambda *s: torch.randn(*s, dtype=torch.bfloat16) * 0.2)(B, S, D)),
            "v": _w((lambda *s: torch.randn(*s, dtype=torch.bfloat16) * 0.2)(B, S, D)),
            "shift_k": _w((lambda *s: torch.randn(*s, dtype=torch.bfloat16) * 0.2)(D, ks) * 0.5),
            "ssm_k": _w((lambda *s: torch.randn(*s, dtype=torch.bfloat16) * 0.2)(D, S) * (1.0 / S ** 0.5)),
            "ssm_D": _w((lambda *s: torch.randn(*s, dtype=torch.bfloat16) * 0.2)(D)),
        }
    _A_in = _A_setup()

    def _B_setup():
        B, S, D, F = 1, 2048, 1024, 3584
        return {
            "x":  _w((lambda *s: torch.randn(*s, dtype=torch.bfloat16) * 0.05)(B, S, D)),
            "w1": _w((lambda *s: torch.randn(*s, dtype=torch.bfloat16) * 1.6)(D, D) * (D ** -0.5)),
            "w2": _w((lambda *s: torch.randn(*s, dtype=torch.bfloat16) * 1.6)(D, D) * (D ** -0.5)),
            "w3": _w((lambda *s: torch.randn(*s, dtype=torch.bfloat16) * 1.6)(D, F) * (D ** -0.5)),
            "w4": _w((lambda *s: torch.randn(*s, dtype=torch.bfloat16) * 1.6)(F, D) * (F ** -0.5)),
        }
    _B_in = _B_setup()

    return {
        "A_q": _A_in["q"],
        "A_k": _A_in["k"],
        "A_v": _A_in["v"],
        "A_shift_k": _A_in["shift_k"],
        "A_ssm_k": _A_in["ssm_k"],
        "A_ssm_D": _A_in["ssm_D"],
        "B_x": _B_in["x"],
        "B_w1": _B_in["w1"],
        "B_w2": _B_in["w2"],
        "B_w3": _B_in["w3"],
        "B_w4": _B_in["w4"],
    }

def reference(A_q, A_k, A_v, A_shift_k, A_ssm_k, A_ssm_D, B_x, B_w1, B_w2, B_w3, B_w4):
    def _A_ref(q, k, v, shift_k, ssm_k, ssm_D):
        B, S, D = q.shape
        ks = shift_k.shape[-1]
        k_pad = _pad(k, ((0, 0), (ks - 1, 0), (0, 0)))
        k_shift = torch.zeros_like(k)
        for t in range(ks):
            k_shift = k_shift + k_pad[:, t:t + S, :] * shift_k[:, ks - 1 - t][None, None, :]
        kv = k_shift * v
        L = 2 * S
        kv_pad = _pad(kv, ((0, 0), (0, S), (0, 0)))
        kf_pad = _pad(ssm_k, ((0, 0), (0, S)))
        kv_f = (lambda x, axes=(-2,-1): torch.fft.rfft2(x.float(), dim=axes))(kv_pad[:, None, :, :], axes=(1, 2))
        kf_f = (lambda x, axes=(-2,-1): torch.fft.rfft2(x.float(), dim=axes))(kf_pad[:, None, :], axes=(1, 2))
        kf_f = (lambda x, *d: x.permute(*d))(kf_f, 1, 2, 0)
        y_f = kv_f * kf_f[None, :, :, :]
        y = (lambda x, s, axes=(-2,-1): torch.fft.irfft2(x, s=s, dim=axes).to(torch.bfloat16))(y_f, (1, L), axes=(1, 2))[:, 0, :S, :]
        y = y + kv * ssm_D[None, None, :]
        return q * y

    def _B_ref(x, w1, w2, w3, w4):
        B, S, D = x.shape
        h = _gelu(_layernorm(x, axis=-1) @ w1)
        c = D // 4
        g0 = _pad(h[:, :, 0*c:1*c], ((0, 0), (1, 0), (0, 0)))[:, :S, :]
        g1 = _pad(h[:, :, 1*c:2*c], ((0, 0), (0, 1), (0, 0)))[:, 1:, :]
        g2 = _pad(h[:, :, 2*c:3*c], ((0, 0), (2, 0), (0, 0)))[:, :S, :]
        g3 = _pad(h[:, :, 3*c:   ], ((0, 0), (0, 2), (0, 0)))[:, 2:, :]
        hs = torch.concatenate([g0, g1, g2, g3], axis=-1) @ w2
        x1 = x + hs
        h2 = _gelu(_layernorm(x1, axis=-1) @ w3) @ w4
        return x1 + h2

    x = A_q
    xn = _layernorm(x, axis=-1)
    s = _A_ref(xn, A_k, A_v, A_shift_k, A_ssm_k, A_ssm_D)
    g = _silu(_B_ref(xn, B_w1, B_w2, B_w3, B_w4))
    return x + s * g
```

```python
import struct
def f2u(f):
    return struct.unpack("<I", struct.pack("<f", f))[0]
def hx32(f):
    return "0x%08x" % f2u(f)

class Kern:
    def __init__(self, name, vgpr=256, agpr=0, sgpr=102):
        self.name = name; self.L = []; self.vgpr = vgpr; self.agpr = agpr; self.sgpr = sgpr
        self.nlab = 0
    def __call__(self, s):
        for ln in s.strip("\n").split("\n"):
            ln = ln.strip()
            if ln: self.L.append("  " + ln)
    def label(self, l): self.L.append(f"{l}:")
    def newlab(self, base="L"):
        self.nlab += 1
        return f"{self.name}_{base}{self.nlab}"
    def text(self):
        return (f".text\n.globl {self.name}\n.p2align 8\n.type {self.name},@function\n{self.name}:\n"
                + "\n".join(self.L) + "\n")
    def desc(self):
        acc = (self.vgpr + 3) // 4 * 4
        nfv = acc + self.agpr if self.agpr else self.vgpr
        return f""".p2align 6
.amdhsa_kernel {self.name}
  .amdhsa_next_free_vgpr {nfv}
  .amdhsa_next_free_sgpr {self.sgpr}
  .amdhsa_accum_offset {acc}
  .amdhsa_group_segment_fixed_size 0
  .amdhsa_kernarg_size 112
  .amdhsa_user_sgpr_count 2
  .amdhsa_user_sgpr_kernarg_segment_ptr 1
  .amdhsa_system_sgpr_workgroup_id_x 1
.end_amdhsa_kernel
"""
def vr(b, n=1, f="v"):
    return f"{f}{b}" if n == 1 else f"{f}[{b}:{b+n-1}]"
def sr(b, n=1):
    return vr(b, n, "s")

def emit_file(path, header_comment, launches, kerns):
    out = header_comment
    for (k, grid, block, lds) in launches:
        out += f"; @launch kernel={k} grid=({grid},1,1) block=({block},1,1) lds={lds}\n"
    out += '.amdgcn_target "amdgcn-amd-amdhsa--gfx950"\n'
    for k in kerns: out += k.text()
    out += '.section .rodata,"a"\n'
    for k in kerns: out += k.desc()
    open(path, "w").write(out)
```

```python
import sys
from asmlib import *

MB = 1 << 20
WS_H   = 0 * MB
WS_X1  = 4 * MB
WS_G3  = 8 * MB
WS_Y   = 24 * MB
WS_KV  = 28 * MB
WS_AUX = 32 * MB
AUX_ST2 = 0
AUX_ST1 = 256 * 1024
AUX_CS3 = 512 * 1024
AUX_DBG = 1 * MB
AUX_SIZE = 4 * MB
C0 = 2.0 * 0.7978845608028654 * 1.4426950408889634
C1 = C0 * 0.044715
LOG2E = 1.4426950408889634
ARG = dict(q=0, k=8, v=16, shk=24, ssmk=32, ssmD=40, w1=56, w2=64, w3=72, w4=80, out=88, dbg=96, ws=104)

class Track:
    def __init__(self, k, name, maxn):
        self.k = k; self.name = name; self.maxn = maxn; self.ops = []; self.done = 0
    def issue(self, tag=None): self.ops.append(tag)
    def wait(self, tags):
        last = -1
        for i in range(len(self.ops) - 1, -1, -1):
            if self.ops[i] in tags: last = i; break
        assert last >= 0, f"wait on never-issued op {tags}"
        n = last + 1
        if n <= self.done: return
        allowed = min(len(self.ops) - n, self.maxn)
        self.k(f"s_waitcnt {self.name}({allowed})")
        self.done = len(self.ops) - allowed
    def wait_all(self):
        if self.done < len(self.ops):
            self.k(f"s_waitcnt {self.name}(0)"); self.done = len(self.ops)

def srd(k, d, base, off, size):
    if off:
        k(f"s_add_u32 s{d}, s{base}, {off}"); k(f"s_addc_u32 s{d+1}, s{base+1}, 0")
    else:
        k(f"s_mov_b32 s{d}, s{base}"); k(f"s_mov_b32 s{d+1}, s{base+1}")
    k(f"s_mov_b32 s{d+2}, {size}"); k(f"s_mov_b32 s{d+3}, 0x20000")

def tile_map(k, mode, s_rb, s_cb, t0, t1):
    k(f"s_and_b32 s{t0}, s2, 7"); k(f"s_lshr_b32 s{t1}, s2, 3"); k(f"s_and_b32 s{t1}, s{t1}, 31")
    lr, lc = {"2x16": (1, 4), "4x8": (2, 3), "8x4": (3, 2)}[mode]
    xc = 4 - lc
    k(f"s_lshr_b32 s{s_rb}, s{t0}, {xc}"); k(f"s_lshl_b32 s{s_rb}, s{s_rb}, {lr}")
    k(f"s_lshr_b32 s{s_cb}, s{t1}, {lc}"); k(f"s_add_u32 s{s_rb}, s{s_rb}, s{s_cb}")
    k(f"s_and_b32 s{s_cb}, s{t0}, {(1<<xc)-1}"); k(f"s_lshl_b32 s{s_cb}, s{s_cb}, {lc}")
    k(f"s_and_b32 s{t1}, s{t1}, {(1<<lc)-1}"); k(f"s_add_u32 s{s_cb}, s{s_cb}, s{t1}")

class Dbg:
    def __init__(self, k, on, slot): self.k = k; self.on = on; self.n = 0; self.slot = slot
    def stamp(self):
        if not self.on: return
        i = self.n; self.n += 1
        self.k(f"s_memtime s[{64+2*i}:{65+2*i}]"); self.k(f"s_memrealtime s[{80+2*i}:{81+2*i}]")
    def flush(self, ws):
        if not self.on: return
        k = self.k
        k("s_waitcnt vmcnt(0)"); self.stamp(); k("s_waitcnt lgkmcnt(0)")
        srd(k, 96, ws, WS_AUX + AUX_DBG + self.slot * 131072, 131072)
        k("v_lshrrev_b32 v1, 6, v0"); k("s_lshl_b32 s63, s2, 2"); k("v_add_u32 v1, s63, v1"); k("v_lshlrev_b32 v1, 6, v1")
        for i in range(self.n):
            k(f"v_mov_b32 v2, s{64+2*i}"); k(f"buffer_store_dword v2, v1, s[96:99], 0 offen offset:{4*i}")
            k(f"v_mov_b32 v2, s{80+2*i}"); k(f"buffer_store_dword v2, v1, s[96:99], 0 offen offset:{32+4*i}")

def p2(r): return f"v[{r}:{r+1}]"
def p4(r): return f"v[{r}:{r+3}]"

def gelu_block(k, items, T):
    n = len(items)
    for (c, cs, P0, P1) in items: k(f"v_pk_fma_f32 {p2(c)}, {p2(cs)}, {p2(P0)}, {p2(c)} op_sel_hi:[1,0,1]")
    for i, (c, cs, P0, P1) in enumerate(items): k(f"v_pk_mul_f32 {p2(T+2*i)}, {p2(c)}, {p2(c)}")
    for i, (c, cs, P0, P1) in enumerate(items): k(f"v_pk_fma_f32 {p2(T+2*i)}, {p2(T+2*i)}, {p2(P1)}, {p2(P1)} op_sel:[0,0,1] op_sel_hi:[1,0,1]")
    for i, (c, cs, P0, P1) in enumerate(items): k(f"v_pk_mul_f32 {p2(T+2*i)}, {p2(T+2*i)}, {p2(c)}")
    for i in range(2 * n): k(f"v_exp_f32 v{T+i}, v{T+i}")
    for i, (c, cs, P0, P1) in enumerate(items): k(f"v_pk_fma_f32 {p2(T+2*i)}, {p2(T+2*i)}, {p2(P0)}, {p2(P0)} op_sel:[0,1,1] op_sel_hi:[1,1,1]")
    for i in range(2 * n): k(f"v_rcp_f32 v{T+i}, v{T+i}")
    for i, (c, cs, P0, P1) in enumerate(items): k(f"v_pk_mul_f32 {p2(c)}, {p2(c)}, {p2(T+2*i)}")

def gelu_consts(k, vR, vmean, P0, P1, t):
    k(f"v_sub_f32 v{P0}, 0, v{vmean}")
    k(f"v_rcp_f32 v{P0+1}, v{vR}")
    k(f"v_mul_f32 v{t}, v{vR}, v{vR}")
    k(f"v_mul_f32 v{P1+1}, {hx32(-C0)}, v{vR}")
    k(f"v_mul_f32 v{t}, {hx32(0.044715)}, v{t}")
    k(f"v_mul_f32 v{P1}, v{t}, v{P1+1}")

def wave_lane(k, s_w, v_lane, vt):
    k(f"v_lshrrev_b32 v{vt}, 6, v0"); k(f"v_and_b32 v{v_lane}, 63, v0"); k(f"v_readfirstlane_b32 s{s_w}, v{vt}")

ST = " sc1"

def gemm64(k, which, dbg, end_label, mapmode="4x8", NSLOT=8, RA=6, PRO=2):
    K4 = which == 4
    NST = 56 if K4 else 16
    a_off, a_size, a_ks = (WS_G3, 14 * MB, 112) if K4 else (WS_H, 4 * MB, 32)
    wrows = 3584 if K4 else 1024
    vm = Track(k, "vmcnt", 63); lg = Track(k, "lgkmcnt", 15)
    D = Dbg(k, dbg, which)
    ACC = 32; WF = 64; AR = 128; EP = AR + 16 * RA
    assert EP + 24 <= 256
    VL = 3; VA0, VA1 = 4, 5; VW0, VW1 = 6, 7; VR = 8
    VQ = 12; VY = 13; VX = 14; VS = 15
    GQ = []
    k(f"s_load_dwordx2 s[28:29], s[0:1], {ARG['w4' if K4 else 'w2']}")
    k(f"s_load_dwordx2 s[30:31], s[0:1], {ARG['ws']}")
    k(f"s_load_dwordx2 s[32:33], s[0:1], {ARG['q']}")
    if K4: k(f"s_load_dwordx2 s[34:35], s[0:1], {ARG['out']}")
    D.stamp()
    tile_map(k, mapmode, 21, 22, 24, 25)
    wave_lane(k, 20, VL, 2)
    k("s_lshl_b32 s23, s21, 3"); k("s_lshl_b32 s24, s20, 1"); k("s_add_u32 s23, s23, s24")
    k(f"s_mul_i32 s24, s23, {a_ks*1024}")
    k(f"v_lshl_add_u32 v{VA0}, v{VL}, 4, s24")
    k(f"v_add_u32 v{VA1}, {a_ks*1024}, v{VA0}")
    k(f"v_lshrrev_b32 v16, 3, v{VL}")
    k(f"v_bfe_u32 v17, v{VL}, 4, 2"); k("v_lshlrev_b32 v17, 1, v17")
    k(f"v_and_b32 v18, 7, v{VL}"); k("v_xor_b32 v17, v17, v18")
    k("s_lshl_b32 s24, s20, 4"); k("v_add_u32 v19, s24, v16")
    k("v_lshlrev_b32 v19, 11, v19"); k("v_lshl_add_u32 v19, v17, 4, v19")
    k("s_lshl_b32 s24, s22, 7"); k(f"v_add_u32 v{VW0}, s24, v19")
    k(f"v_add_u32 v{VW1}, {8*2048-1024}, v{VW0}")
    k(f"v_lshrrev_b32 v19, 2, v{VL}"); k("v_lshlrev_b32 v19, 7, v19")
    k(f"v_and_b32 v20, 3, v{VL}"); k("v_lshl_add_u32 v19, v20, 3, v19")
    k(f"v_bfe_u32 v20, v{VL}, 3, 2")
    for t in range(4):
        k(f"v_xor_b32 v21, {t}, v20"); k(f"v_lshl_add_u32 v{VR+t}, v21, 5, v19")
    k(f"v_lshrrev_b32 v20, 4, v{VL}"); k("v_xor_b32 v20, v20, v18")
    k("s_lshl_b32 s24, s23, 4"); k("v_add_u32 v21, s24, v16"); k("v_lshlrev_b32 v21, 11, v21")
    k("s_lshl_b32 s24, s22, 7"); k("v_add_u32 v21, s24, v21")
    k(f"v_lshl_add_u32 v{VQ}, v20, 4, v21")
    k("v_xor_b32 v20, 4, v20"); k(f"v_lshl_add_u32 v22, v20, 4, v21")
    k("s_lshl_b32 s24, s23, 15"); k("s_lshl_b32 s25, s22, 11"); k("s_add_u32 s24, s24, s25")
    k(f"v_lshl_add_u32 v{VX}, v{VL}, 4, s24")
    k(f"v_add_u32 v23, 32768, v{VX}")
    k(f"v_and_b32 v20, 15, v{VL}"); k("s_lshl_b32 s24, s23, 7"); k(f"v_lshl_add_u32 v{VS}, v20, 3, s24")
    if K4:
        k(f"v_lshrrev_b32 v20, 2, v{VL}"); k("s_lshl_b32 s24, s22, 6"); k("v_add_u32 v20, s24, v20")
        k("v_lshlrev_b32 v20, 12, v20")
        k(f"v_bfe_u32 v21, v{VL}, 4, 1"); k("v_lshlrev_b32 v21, 1, v21")
        k(f"v_and_b32 v24, 3, v{VL}"); k("v_xor_b32 v21, v21, v24")
        k("v_lshl_add_u32 v20, v21, 4, v20")
        k("s_lshl_b32 s24, s23, 5"); k(f"v_add_u32 v{VY}, s24, v20")
    k("s_lshl_b32 s27, s20, 11")
    k("s_lshl_b32 s26, s20, 12")
    k("s_waitcnt lgkmcnt(0)")
    srd(k, 4, 30, a_off, a_size)
    srd(k, 8, 28, 0, wrows * 2048)
    srd(k, 12, 30, WS_X1, 4 * MB)
    srd(k, 16, 30, WS_AUX, AUX_SIZE)
    srd(k, 36, 32, 0, 4 * MB)
    if K4:
        srd(k, 40, 30, WS_Y, 4 * MB)
        srd(k, 44, 34, 0, 4 * MB)
    k("s_mov_b32 s24, 0"); k("s_mov_b32 s25, 0")

    def dma_w(s):
        k(f"s_add_u32 m0, s27, {(s % NSLOT)*8192}"); k("s_nop 0")
        k(f"buffer_load_dwordx4 v{VW0}, s[8:11], s25 offen lds"); vm.issue(("W", s))
        k(f"buffer_load_dwordx4 v{VW1}, s[8:11], s25 offen offset:1024 lds"); vm.issue(("W", s))
        k(f"s_add_u32 s25, s25, {64*2048}")
    def load_a(s, ks):
        for mt in range(2):
            r = AR + (s % RA) * 16 + 8 * ks + 4 * mt
            k(f"buffer_load_dwordx4 {p4(r)}, v{VA0+mt}, s[4:7], s24 offen offset:{1024*ks}"); vm.issue(("A", s, ks))
        if ks == 1: k("s_add_u32 s24, s24, 2048")
    def rd_w(s, ks, t, u):
        r = WF + (s % 2) * 32 + 16 * ks + 4 * t + 2 * u
        k(f"ds_read_b64_tr_b16 {p2(r)}, v{VR+t} offset:{(s % NSLOT)*8192 + (32*ks+16*u)*128}"); lg.issue(("R", s, ks, t))
    first_free = NST - NSLOT
    QL = (first_free % NSLOT) * 8192
    YL = QL + 16384
    assert first_free % NSLOT == 0
    def dma_q(i):
        k(f"s_add_u32 m0, s26, {QL + i*1024}"); k(f"s_mov_b32 s48, {i*8*2048}")
        k(f"buffer_load_dwordx4 v{VQ if i % 2 == 0 else 22}, s[36:39], s48 offen lds"); vm.issue("Q")
    def dma_y(i):
        k(f"s_add_u32 m0, s26, {YL + i*1024}"); k(f"s_mov_b32 s48, {i*16*4096}")
        k(f"buffer_load_dwordx4 v{VY}, s[40:43], s48 offen lds"); vm.issue("Y")
    def load_x1():
        for mt in range(2):
            for p in range(2):
                k(f"buffer_load_dwordx4 {p4(EP+8*mt+4*p)}, v{VX if mt == 0 else 23}, s[12:15], 0 offen offset:{1024*p}"); vm.issue("X")
    def load_st():
        k(f"s_mov_b32 s48, {AUX_ST1}")
        for mt in range(2):
            k(f"buffer_load_dwordx2 {p2(EP+16+2*mt)}, v{VS}, s[16:19], s48 offen offset:{128*mt}"); vm.issue("S")

    dma_w(0); load_a(0, 0); load_a(0, 1)
    for s in range(1, max(NSLOT, RA)):
        tgt = (lambda f: f()) if s <= PRO else GQ.append
        if s < NSLOT: tgt(lambda s=s: dma_w(s))
        if s < RA: tgt(lambda s=s: load_a(s, 0)); tgt(lambda s=s: load_a(s, 1))
    vm.wait([("W", 0)]); k("s_barrier")
    D.stamp()
    for ks in range(2):
        for t in range(4):
            for u in range(2): rd_w(0, ks, t, u)
    for s in range(NST):
        lg.wait_all()
        if s + 1 < NST:
            vm.wait([("W", s + 1)]); k("s_barrier")
        if s + NSLOT < NST: GQ.append(lambda s=s: dma_w(s + NSLOT))
        if s == first_free + 1:
            for i in range(4): GQ.append(lambda i=i: dma_q(i))
            GQ.append(load_st)
        if K4 and s == first_free + 3:
            for i in range(4): GQ.append(lambda i=i: dma_y(i))
            GQ.append(load_x1)
        reads = [] if s + 1 == NST else [(s + 1, ks, t, u) for ks in range(2) for t in range(4) for u in range(2)]
        for ks in range(2):
            vm.wait([("A", s, ks)])
            for t in range(4):
                for mt in range(2):
                    a = WF + (s % 2) * 32 + 16 * ks + 4 * t; b = AR + (s % RA) * 16 + 8 * ks + 4 * mt; c = ACC + 8 * t + 4 * mt
                    cin = "0" if (s == 0 and ks == 0) else p4(c)
                    k(f"v_mfma_f32_16x16x32_bf16 {p4(c)}, {p4(a)}, {p4(b)}, {cin}")
                    if reads:
                        rd_w(*reads.pop(0))
                        if reads and ks == 0: rd_w(*reads.pop(0))
                    elif GQ: GQ.pop(0)()
            if s + RA < NST: GQ.append(lambda s=s, ks=ks: load_a(s + RA, ks))
        if GQ: GQ.pop(0)()
    while GQ: GQ.pop(0)()
    D.stamp()
    k(f"v_and_b32 v16, 15, v{VL}"); k("v_lshlrev_b32 v17, 7, v16")
    k(f"v_bfe_u32 v18, v{VL}, 4, 1"); k("v_lshl_add_u32 v17, v18, 3, v17")
    k(f"s_add_u32 s48, s26, {QL}"); k("v_add_u32 v17, s48, v17")
    k("v_lshrrev_b32 v16, 1, v16"); k(f"v_lshrrev_b32 v18, 5, v{VL}"); k("v_xor_b32 v16, v16, v18")
    for t in range(4):
        k(f"v_xor_b32 v18, {2*t}, v16"); k(f"v_lshl_add_u32 v{24+t}, v18, 4, v17")
    QR = WF; YR = WF + 16; T = WF + 32
    vm.wait(["Q", "S", "Y", "X"])
    for t in range(4):
        for mt in range(2):
            k(f"ds_read_b64 {p2(QR+4*t+2*mt)}, v{24+t} offset:{2048*mt}"); lg.issue(("q", t))
    if K4:
        k(f"v_lshrrev_b32 v16, 2, v{VL}"); k("v_lshlrev_b32 v16, 6, v16")
        k(f"v_and_b32 v18, 3, v{VL}"); k("v_lshl_add_u32 v16, v18, 3, v16")
        k(f"s_add_u32 s48, s26, {YL}"); k("v_add_u32 v16, s48, v16")
        k(f"v_bfe_u32 v18, v{VL}, 4, 1")
        k("v_lshl_add_u32 v28, v18, 5, v16"); k("v_xor_b32 v18, 1, v18"); k("v_lshl_add_u32 v29, v18, 5, v16")
        for t in range(4):
            for mt in range(2):
                k(f"ds_read_b64_tr_b16 {p2(YR+4*t+2*mt)}, v{28+mt} offset:{1024*t}"); lg.issue(("y", t))
    for mt in range(2):
        r = EP + 16 + 2 * mt
        k(f"v_mul_f32 v{r}, v{r}, v{r+1}"); k(f"v_sub_f32 v{r}, 0, v{r}")
    def unpack(dst, src):
        k(f"v_lshlrev_b32 v{dst}, 16, v{src}"); k(f"v_and_b32 v{dst+1}, 0xffff0000, v{src}")
    U = AR
    if not K4:
        k("v_mov_b32 v16, 0x3f803f80")
        SS = 18
        for i in range(4): k(f"v_mov_b32 v{SS+i}, 0")
        PK = T
        for t in range(4):
            lg.wait([("q", t)])
            for mt in range(2):
                for h in range(2): unpack(U + 8 * t + 4 * mt + 2 * h, QR + 4 * t + 2 * mt + h)
            for mt in range(2):
                st = EP + 16 + 2 * mt
                for h in range(2):
                    u = U + 8 * t + 4 * mt + 2 * h; c = ACC + 8 * t + 4 * mt + 2 * h
                    k(f"v_pk_fma_f32 {p2(u)}, {p2(u)}, {p2(st)}, {p2(st)} op_sel:[0,1,0] op_sel_hi:[1,1,0]")
                    k(f"v_pk_add_f32 {p2(c)}, {p2(c)}, {p2(u)}")
            for mt in range(2):
                for h in range(2):
                    c = ACC + 8 * t + 4 * mt + 2 * h
                    d = PK + 8 * mt + 4 * (t // 2) + 2 * (t % 2) + h
                    k(f"v_cvt_pk_bf16_f32 v{d}, v{c}, v{c+1}")
            if t % 2 == 1:
                for mt in range(2):
                    d = PK + 8 * mt + 4 * (t // 2)
                    k(f"buffer_store_dwordx4 {p4(d)}, v{VX if mt == 0 else 23}, s[12:15], 0 offen offset:{1024*(t//2)}{ST}")
        for i in range(8):
            for mt in range(2):
                k(f"v_dot2_f32_bf16 v{SS+2*mt}, v{PK+8*mt+i}, v16, v{SS+2*mt}")
                k(f"v_dot2_f32_bf16 v{SS+2*mt+1}, v{PK+8*mt+i}, v{PK+8*mt+i}, v{SS+2*mt+1}")
        k("s_nop 3")
        k(f"v_permlane16_swap_b32 v{SS}, v{SS+1}"); k(f"v_permlane16_swap_b32 v{SS+2}, v{SS+3}")
        k("s_nop 1")
        k(f"v_add_f32 v{SS}, v{SS}, v{SS+1}"); k(f"v_add_f32 v{SS+2}, v{SS+2}, v{SS+3}")
        k("s_nop 1")
        k(f"v_permlane32_swap_b32 v{SS}, v{SS+2}")
        k("s_nop 1")
        k(f"v_add_f32 v{SS}, v{SS}, v{SS+2}")
        k(f"v_lshrrev_b32 v16, 5, v{VL}"); k("v_lshlrev_b32 v16, 11, v16")
        k(f"v_and_b32 v17, 31, v{VL}"); k("v_lshl_add_u32 v16, v17, 4, v16")
        k("s_lshl_b32 s48, s23, 11"); k("s_lshr_b32 s49, s22, 2"); k("s_lshl_b32 s49, s49, 9"); k("s_add_u32 s48, s48, s49")
        k("s_and_b32 s49, s22, 3"); k("s_lshl_b32 s49, s49, 2"); k("s_add_u32 s48, s48, s49")
        if AUX_ST2: k(f"s_add_u32 s48, s48, {AUX_ST2}")
        k(f"buffer_store_dword v{SS}, v16, s[16:19], s48 offen{ST}")
    else:
        k(f"s_mov_b32 s50, {hx32(-LOG2E)}"); k(f"s_mov_b32 s51, {hx32(-LOG2E)}")
        UQ = U; UY = U + 32; UX = U + 64
        for t in range(4):
            lg.wait([("q", t), ("y", t)])
            it = [(mt, h) for mt in range(2) for h in range(2)]
            o = lambda mt, h: 8 * t + 4 * mt + 2 * h
            for mt, h in it: unpack(UX + o(mt, h), EP + 8 * mt + 4 * (t // 2) + 2 * (t % 2) + h)
            for mt, h in it: k(f"v_pk_add_f32 {p2(ACC+o(mt,h))}, {p2(ACC+o(mt,h))}, {p2(UX+o(mt,h))}")
            for mt, h in it: k(f"v_pk_mul_f32 {p2(UX+o(mt,h))}, {p2(ACC+o(mt,h))}, s[50:51]")
            for i in range(8): k(f"v_exp_f32 v{UX+8*t+i}, v{UX+8*t+i}")
            for mt, h in it: unpack(UQ + o(mt, h), QR + 4 * t + 2 * mt + h)
            for mt, h in it: k(f"v_pk_add_f32 {p2(UX+o(mt,h))}, {p2(UX+o(mt,h))}, 1.0 op_sel_hi:[1,0]")
            for i in range(8): k(f"v_rcp_f32 v{UX+8*t+i}, v{UX+8*t+i}")
            for mt, h in it: unpack(UY + o(mt, h), YR + 4 * t + 2 * mt + h)
            for mt, h in it: k(f"v_pk_mul_f32 {p2(ACC+o(mt,h))}, {p2(ACC+o(mt,h))}, {p2(UX+o(mt,h))}")
            for mt, h in it:
                st = EP + 16 + 2 * mt
                k(f"v_pk_fma_f32 {p2(UX+o(mt,h))}, {p2(UQ+o(mt,h))}, {p2(st)}, {p2(st)} op_sel:[0,1,0] op_sel_hi:[1,1,0]")
            for mt, h in it: k(f"v_pk_mul_f32 {p2(UX+o(mt,h))}, {p2(UX+o(mt,h))}, {p2(UY+o(mt,h))}")
            for mt, h in it: k(f"v_pk_fma_f32 {p2(ACC+o(mt,h))}, {p2(ACC+o(mt,h))}, {p2(UX+o(mt,h))}, {p2(UQ+o(mt,h))}")
            for mt, h in it: k(f"v_cvt_pk_bf16_f32 v{T+4*t+2*mt+h}, v{ACC+o(mt,h)}, v{ACC+o(mt,h)+1}")
            for mt in range(2):
                k(f"ds_write_b64 v{24+t}, {p2(T+4*t+2*mt)} offset:{2048*mt}"); lg.issue("o")
        lg.wait_all()
        k(f"s_add_u32 s48, s26, {QL}"); k(f"v_lshl_add_u32 v16, v{VL}, 4, s48")
        for i in range(4):
            k(f"ds_read_b128 {p4(QR+4*i)}, v16 offset:{1024*i}"); lg.issue(("ob", i))
        for i in range(4):
            lg.wait([("ob", i)])
            k(f"s_mov_b32 s48, {i*8*2048}")
            k(f"buffer_store_dwordx4 {p4(QR+4*i)}, v{VQ if i % 2 == 0 else 22}, s[44:47], s48 offen")
    D.stamp(); D.flush(30)
    k(f"s_branch {end_label}")
    return NSLOT * 8192

def gemm1(k, dbg, end_label, mapmode="4x8", NSLOT=3):
    NST = 16; STG = 24576
    vm = Track(k, "vmcnt", 63); lg = Track(k, "lgkmcnt", 15)
    D = Dbg(k, dbg, 1)
    ACC = 32; WF = 64; AF = 128; SUM = 160; GRM = 168; CSA = 176; ONE = 184
    VL = 3; VW0, VW1 = 6, 7; VR = 8
    VQ0, VQ1 = 4, 5; VAR = 16
    GQ = []
    k(f"s_load_dwordx2 s[28:29], s[0:1], {ARG['w1']}")
    k(f"s_load_dwordx2 s[30:31], s[0:1], {ARG['ws']}")
    k(f"s_load_dwordx2 s[32:33], s[0:1], {ARG['q']}")
    D.stamp()
    tile_map(k, mapmode, 21, 22, 24, 25)
    wave_lane(k, 20, VL, 2)
    k("s_lshl_b32 s23, s21, 3"); k("s_lshl_b32 s24, s20, 1"); k("s_add_u32 s23, s23, s24")
    k("s_lshr_b32 s24, s22, 3"); k("s_add_u32 s24, s24, 1")
    k("s_sub_u32 s25, 0, s24"); k("s_bitcmp1_b32 s22, 2"); k("s_cselect_b32 s34, s24, s25")
    k(f"v_lshrrev_b32 v20, 3, v{VL}")
    k(f"v_bfe_u32 v21, v{VL}, 4, 1"); k("v_lshlrev_b32 v21, 1, v21")
    k(f"v_and_b32 v22, 7, v{VL}"); k("v_xor_b32 v21, v21, v22")
    k("s_lshl_b32 s24, s20, 4"); k("v_add_u32 v23, s24, v20"); k("v_lshlrev_b32 v23, 11, v23")
    k("s_lshl_b32 s24, s22, 7"); k("v_add_u32 v23, s24, v23")
    k(f"v_lshl_add_u32 v{VW0}, v21, 4, v23")
    k("v_xor_b32 v21, 4, v21"); k(f"v_lshl_add_u32 v{VW1}, v21, 4, v23"); k(f"v_add_u32 v{VW1}, {8*2048-1024}, v{VW1}")
    k(f"v_lshrrev_b32 v21, 4, v{VL}"); k("v_xor_b32 v21, v21, v22")
    k("s_lshl_b32 s24, s23, 4"); k("s_add_u32 s24, s24, s34")
    k("v_add_u32 v23, s24, v20"); k("v_lshlrev_b32 v23, 11, v23")
    k(f"v_lshl_add_u32 v{VQ0}, v21, 4, v23")
    k("v_xor_b32 v21, 4, v21"); k(f"v_lshl_add_u32 v{VQ1}, v21, 4, v23")
    k(f"v_add_u32 v{VQ1}, {8*2048-1024}, v{VQ1}")
    k(f"v_add_u32 v18, {16*2048-2048}, v{VQ0}")
    k(f"v_add_u32 v19, {16*2048-2048}, v{VQ1}")
    k(f"v_lshrrev_b32 v20, 4, v{VL}"); k("v_lshlrev_b32 v20, 3, v20")
    k(f"v_bfe_u32 v21, v{VL}, 2, 2"); k("v_add_u32 v20, v20, v21"); k("v_lshlrev_b32 v20, 7, v20")
    k(f"v_and_b32 v21, 3, v{VL}"); k("v_lshl_add_u32 v20, v21, 3, v20")
    k(f"v_bfe_u32 v21, v{VL}, 3, 2")
    k("s_and_b32 s24, s20, 2"); k("v_xor_b32 v21, s24, v21")
    k("s_and_b32 s25, s20, 1"); k("s_lshl_b32 s24, s25, 12"); k("s_xor_b32 s25, s24, 4096")
    for t in range(4):
        k(f"v_xor_b32 v22, {t}, v21"); k("v_lshl_add_u32 v22, v22, 5, v20")
        k(f"v_add_u32 v{VR+t}, s24, v22"); k(f"v_add_u32 v{VR+4+t}, s25, v22")
    k(f"v_and_b32 v20, 15, v{VL}"); k("v_lshlrev_b32 v21, 7, v20")
    k("s_lshl_b32 s26, s20, 12"); k("s_add_u32 s26, s26, 8192"); k("v_add_u32 v21, s26, v21")
    k("v_lshrrev_b32 v20, 1, v20"); k(f"v_lshrrev_b32 v22, 4, v{VL}"); k("v_xor_b32 v20, v20, v22")
    k("s_and_b32 s25, s20, 1"); k("s_lshl_b32 s25, s25, 2"); k("v_xor_b32 v20, s25, v20")
    k(f"v_lshl_add_u32 v{VAR}, v20, 4, v21"); k("v_xor_b32 v20, 4, v20"); k(f"v_lshl_add_u32 v{VAR+1}, v20, 4, v21")
    for i in range(4): k(f"v_mov_b32 v{ONE+i}, 0x3f803f80")
    k("s_lshl_b32 s27, s20, 11")
    k("s_waitcnt lgkmcnt(0)")
    srd(k, 4, 32, 0, 4 * MB); srd(k, 8, 28, 0, 2 * MB); srd(k, 12, 30, WS_H, 4 * MB); srd(k, 16, 30, WS_AUX + AUX_ST1, 16384)
    k("s_mov_b32 s24, 0"); k("s_mov_b32 s25, 0")
    def dma_w(s):
        k(f"s_add_u32 m0, s27, {(s % NSLOT)*STG}"); k("s_nop 0")
        k(f"buffer_load_dwordx4 v{VW0}, s[8:11], s25 offen lds"); vm.issue(("W", s))
        k(f"buffer_load_dwordx4 v{VW1}, s[8:11], s25 offen offset:1024 lds"); vm.issue(("W", s))
        k(f"s_add_u32 s25, s25, {64*2048}")
    def dma_a(s, h):
        k(f"s_add_u32 m0, s26, {(s % NSLOT)*STG}"); k("s_nop 0")
        for i in (2 * h, 2 * h + 1):
            k(f"buffer_load_dwordx4 v{[VQ0,VQ1,18,19][i]}, s[4:7], s24 offen offset:{1024*i} lds"); vm.issue(("W", s))
        if h == 1: k("s_add_u32 s24, s24, 128")
    def rd_w(s, ks, t, u):
        r = WF + (s % 2) * 32 + 16 * ks + 4 * t + 2 * u
        k(f"ds_read_b64_tr_b16 {p2(r)}, v{VR+4*ks+t} offset:{(s % NSLOT)*STG + 4*u*128}"); lg.issue("R")
    def rd_a(s, ks, mt):
        r = AF + (s % 2) * 16 + 8 * ks + 4 * mt
        k(f"ds_read_b128 {p4(r)}, v{VAR+ks} offset:{(s % NSLOT)*STG + 2048*mt}"); lg.issue("R")
    def allreads(s):
        L = []
        for ks in range(2):
            L += [lambda ks=ks, mt=mt: rd_a(s, ks, mt) for mt in range(2)]
            L += [lambda ks=ks, t=t, u=u: rd_w(s, ks, t, u) for t in range(4) for u in range(2)]
        return L
    for s in range(NSLOT):
        dma_a(s, 0); dma_a(s, 1); dma_w(s)
    vm.wait([("W", 0)]); k("s_barrier")
    D.stamp()
    for f in allreads(0): f()
    for s in range(NST):
        lg.wait_all()
        if s + 1 < NST:
            vm.wait([("W", s + 1)]); k("s_barrier")
        if s + NSLOT < NST:
            dma_a(s + NSLOT, 0); dma_a(s + NSLOT, 1); dma_w(s + NSLOT)
        reads = [] if s + 1 == NST else allreads(s + 1)
        first = s == 0
        for ks in range(2):
            ops = []
            for t in range(4):
                for mt in range(2):
                    ops.append((ACC + 8 * t + 4 * mt, WF + (s % 2) * 32 + 16 * ks + 4 * t, AF + (s % 2) * 16 + 8 * ks + 4 * mt))
            for mt in range(2):
                b = AF + (s % 2) * 16 + 8 * ks + 4 * mt
                ops.append((SUM + 4 * mt, ONE, b)); ops.append((GRM + 4 * mt, b, b))
            if ks == 0:
                for t in range(2): ops.append((CSA + 4 * t, WF + (s % 2) * 32 + 4 * t, ONE))
            for (c, a, b) in ops:
                cin = "0" if (first and ks == 0) else p4(c)
                k(f"v_mfma_f32_16x16x32_bf16 {p4(c)}, {p4(a)}, {p4(b)}, {cin}")
                if reads: reads.pop(0)()
        assert not reads
    D.stamp()
    CSL = ((NST - 2) % NSLOT) * STG
    k(f"v_lshrrev_b32 v20, 4, v{VL}"); k("v_lshlrev_b32 v20, 4, v20")
    k("s_and_b32 s24, s20, 1"); k("s_lshl_b32 s24, s24, 8"); k("s_and_b32 s25, s20, 2"); k("s_lshl_b32 s25, s25, 6")
    k("s_add_u32 s24, s24, s25"); k(f"s_add_u32 s24, s24, {CSL}"); k("v_add_u32 v21, s24, v20")
    k("s_nop 4")
    for t in range(2):
        k(f"ds_write_b128 v21, {p4(CSA+4*t)} offset:{64*t}"); lg.issue("cw")
    k(f"v_and_b32 v22, 3, v{VL}")
    k("v_cmp_eq_u32 s[36:37], 1, v22"); k("v_cmp_eq_u32 s[38:39], 2, v22"); k("v_cmp_eq_u32 s[40:41], 3, v22")
    k(f"v_and_b32 v22, 15, v{VL}"); k("v_lshrrev_b32 v23, 2, v22"); k("v_lshl_add_u32 v22, v23, 4, v22"); k("v_lshlrev_b32 v22, 2, v22")
    for mt in range(2):
        g = GRM + 4 * mt
        k(f"v_cndmask_b32 v{g}, v{g}, v{g+1}, s[36:37]"); k(f"v_cndmask_b32 v{g}, v{g}, v{g+2}, s[38:39]"); k(f"v_cndmask_b32 v{g}, v{g}, v{g+3}, s[40:41]")
        k(f"ds_bpermute_b32 v{g+1}, v22, v{g}"); lg.issue("bp")
    lg.wait_all(); k("s_barrier")
    k(f"s_add_u32 s24, s25, {CSL}"); k("v_add_u32 v21, s24, v20")
    k(f"s_xor_b32 s25, s25, 128"); k(f"s_add_u32 s24, s25, {CSL}"); k("v_add_u32 v23, s24, v20")
    CS = WF
    for tau in range(4):
        for part in range(2):
            k(f"ds_read_b128 {p4(CS+8*tau+4*part)}, v{21 if tau < 2 else 23} offset:{256*part + 64*(tau%2)}"); lg.issue("cr")
    P = AF
    for mt in range(2):
        sm = SUM + 4 * mt; sq = GRM + 4 * mt + 1
        k(f"v_mul_f32 v{sm}, {hx32(1/1024)}, v{sm}")
        k(f"v_mul_f32 v{sq}, {hx32(1/1024)}, v{sq}")
        k(f"v_fma_f32 v{sq}, -v{sm}, v{sm}, v{sq}"); k(f"v_max_f32 v{sq}, 0, v{sq}")
        k(f"v_add_f32 v{sm+1}, {hx32(1e-5)}, v{sq}"); k(f"v_rsq_f32 v{sm+1}, v{sm+1}")
        k("s_nop 0")
        k(f"v_mul_f32 v{sq}, v{sq}, v{sm+1}"); k(f"v_mul_f32 v{sq}, v{sq}, v{sm+1}")
        k(f"v_add_f32 v{sq}, {hx32(1e-5)}, v{sq}"); k(f"v_rsq_f32 v{sq}, v{sq}"); k("s_nop 0")
        k(f"v_mul_f32 v{sq}, v{sq}, v{sm+1}")
        gelu_consts(k, sq, sm, P + 4 * mt, P + 4 * mt + 2, 24)
    lab = k.newlab("nost")
    k("s_and_b32 s24, s22, 11"); k("s_cmp_lg_u32 s24, 0"); k(f"s_cbranch_scc1 {lab}")
    k(f"v_and_b32 v24, 15, v{VL}"); k("s_lshl_b32 s24, s23, 4"); k("s_add_u32 s24, s24, s34")
    k("v_add_u32 v24, s24, v24"); k("v_lshlrev_b32 v24, 3, v24"); k("v_add_u32 v25, 128, v24")
    k(f"buffer_store_dwordx2 {p2(SUM)}, v24, s[16:19], 0 offen{ST}")
    k(f"buffer_store_dwordx2 {p2(SUM+4)}, v25, s[16:19], 0 offen{ST}")
    k.label(lab)
    lg.wait_all()
    for tau in range(4):
        for h in range(2): k(f"v_pk_add_f32 {p2(CS+8*tau+2*h)}, {p2(CS+8*tau+2*h)}, {p2(CS+8*tau+4+2*h)}")
    k("s_lshl_b32 s24, s23, 15"); k("s_lshl_b32 s25, s22, 11"); k("s_add_u32 s24, s24, s25")
    k(f"v_lshl_add_u32 v24, v{VL}, 4, s24"); k("v_add_u32 v25, 32768, v24")
    k("s_and_b32 s25, s20, 2"); k("s_lshl_b32 s42, s25, 9"); k("s_xor_b32 s43, s42, 1024")
    T = WF + 32; PK = AF + 16
    for p in range(2):
        items = [(ACC + 8 * (2 * p + j) + 4 * mt + 2 * h, CS + 8 * (2 * p + j) + 2 * h, P + 4 * mt, P + 4 * mt + 2)
                 for mt in range(2) for j in range(2) for h in range(2)]
        gelu_block(k, items, T)
        for i, it in enumerate(items): k(f"v_cvt_pk_bf16_f32 v{PK+8*p+i}, v{it[0]}, v{it[0]+1}")
        for mt in range(2):
            k(f"buffer_store_dwordx4 {p4(PK+8*p+4*mt)}, v{24+mt}, s[12:15], s{42+p} offen{ST}")
    D.stamp(); D.flush(30)
    k(f"s_branch {end_label}")
    return NSLOT * STG

def side_kv(k, end_label):
    vm = Track(k, "vmcnt", 63); lg = Track(k, "lgkmcnt", 15)
    VL = 3
    k(f"s_load_dwordx4 s[28:31], s[0:1], {ARG['k']}")
    k(f"s_load_dwordx4 s[32:35], s[0:1], {ARG['shk']}")
    k(f"s_load_dwordx2 s[36:37], s[0:1], {ARG['ws']}")
    k(f"s_load_dwordx2 s[38:39], s[0:1], {ARG['w2']}")
    k("s_sub_u32 s21, s2, 256")
    k("s_lshr_b32 s22, s21, 4"); k("s_and_b32 s23, s21, 15")
    wave_lane(k, 20, VL, 2)
    k(f"v_and_b32 v4, 7, v{VL}"); k(f"v_lshrrev_b32 v5, 3, v{VL}")
    k("s_lshl_b32 s24, s22, 7"); k("s_lshl_b32 s25, s20, 5"); k("s_add_u32 s24, s24, s25")
    k("v_lshl_add_u32 v6, v5, 2, s24")
    k("v_lshlrev_b32 v7, 11, v6"); k("v_lshl_add_u32 v7, v4, 4, v7")
    k("s_lshl_b32 s24, s23, 7"); k("v_add_u32 v7, s24, v7")
    k("v_subrev_u32 v8, 6144, v7"); k("v_cmp_eq_u32 vcc, 0, v6"); k("v_mov_b32 v9, 0x80000000")
    k("s_lshl_b32 s24, s23, 9"); k("v_lshl_add_u32 v10, v4, 6, s24")
    k("v_cndmask_b32 v8, v8, v9, vcc")
    k("s_waitcnt lgkmcnt(0)")
    srd(k, 4, 28, 0, 4 * MB); srd(k, 8, 30, 0, 4 * MB); srd(k, 12, 32, 0, 8192); srd(k, 16, 36, WS_KV, 4 * MB)
    srd(k, 40, 34, 0, 4 * MB); srd(k, 44, 38, 0, 2 * MB)
    k("s_movk_i32 s24, 4096")
    KR = 32; VR = 60; SK = 76
    for i in range(4): k(f"buffer_load_dwordx4 {p4(SK+4*i)}, v10, s[12:15], 0 offen offset:{16*i}"); vm.issue("sk")
    for d in range(7):
        base, dd = (8, d) if d < 3 else (7, d - 3)
        so = "s24" if dd >= 2 else "0"
        k(f"buffer_load_dwordx4 {p4(KR+4*d)}, v{base}, s[4:7], {so} offen offset:{2048*(dd%2)}"); vm.issue(("k", d))
    for d in range(4):
        so = "s24" if d >= 2 else "0"
        k(f"buffer_load_dwordx4 {p4(VR+4*d)}, v7, s[8:11], {so} offen offset:{2048*(d%2)}"); vm.issue(("v", d))
    k("s_lshl_b32 s25, s21, 6"); k(f"v_add_u32 v11, s25, v{VL}"); k("v_lshlrev_b32 v11, 7, v11")
    lab1 = k.newlab("t"); lab2 = k.newlab("t")
    k("s_cmp_lg_u32 s20, 0"); k(f"s_cbranch_scc1 {lab1}")
    k("buffer_load_dword v12, v11, s[44:47], 0 offen")
    k(f"s_branch {lab2}")
    k.label(lab1)
    k("s_and_b32 s25, s20, 1"); k("s_lshl_b32 s25, s25, 21")
    k("buffer_load_dword v12, v11, s[40:43], s25 offen")
    k.label(lab2)
    vm.issue("touch")
    WW = 96; UK = 128; UV = 184; O = 216
    vm.wait(["sk"])
    for e in range(8):
        for d in range(4):
            src = SK + 2 * e + d // 2; dst = WW + 8 * d + e
            k(f"v_lshlrev_b32 v{dst}, 16, v{src}" if d % 2 == 0 else f"v_and_b32 v{dst}, 0xffff0000, v{src}")
    def unp(dst, src):
        for j in range(4):
            k(f"v_lshlrev_b32 v{dst+2*j}, 16, v{src+j}"); k(f"v_and_b32 v{dst+2*j+1}, 0xffff0000, v{src+j}")
    for d in range(7):
        vm.wait([("k", d)]); unp(UK + 8 * d, KR + 4 * d)
    for tk in range(4):
        for j in range(4): k(f"v_pk_mul_f32 {p2(O+8*tk+2*j)}, {p2(UK+8*(tk+3)+2*j)}, {p2(WW+2*j)}")
        for d in range(1, 4):
            for j in range(4):
                k(f"v_pk_fma_f32 {p2(O+8*tk+2*j)}, {p2(UK+8*(tk+3-d)+2*j)}, {p2(WW+8*d+2*j)}, {p2(O+8*tk+2*j)}")
    for tk in range(4):
        vm.wait([("v", tk)]); unp(UV + 8 * tk, VR + 4 * tk)
        for j in range(4): k(f"v_pk_mul_f32 {p2(O+8*tk+2*j)}, {p2(O+8*tk+2*j)}, {p2(UV+8*tk+2*j)}")
    k("v_lshrrev_b32 v13, 1, v5"); k("s_lshl_b32 s25, s20, 2"); k("v_add_u32 v13, s25, v13"); k("v_xor_b32 v13, v13, v4")
    k("v_lshlrev_b32 v13, 4, v13"); k("v_lshl_add_u32 v13, v4, 11, v13")
    k("v_and_b32 v14, 1, v5"); k("v_lshl_add_u32 v13, v14, 3, v13")
    for e in range(8):
        k(f"v_cvt_pk_bf16_f32 v{KR+2*e}, v{O+e}, v{O+8+e}"); k(f"v_cvt_pk_bf16_f32 v{KR+2*e+1}, v{O+16+e}, v{O+24+e}")
        k(f"ds_write_b64 v13, {p2(KR+2*e)} offset:{256*e}"); lg.issue("w")
    k(f"v_lshrrev_b32 v14, 4, v{VL}"); k("s_lshl_b32 s25, s20, 4"); k("v_add_u32 v14, s25, v14")
    k(f"v_and_b32 v15, 15, v{VL}"); k("s_lshl_b32 s25, s20, 1"); k("v_xor_b32 v16, s25, v15")
    k("v_lshlrev_b32 v17, 8, v14"); k("v_lshl_add_u32 v18, v16, 4, v17")
    k("v_xor_b32 v16, 1, v16"); k("v_lshl_add_u32 v19, v16, 4, v17")
    k("s_lshl_b32 s25, s23, 6"); k("v_add_u32 v14, s25, v14"); k("v_lshlrev_b32 v14, 12, v14")
    k("v_lshl_add_u32 v14, v15, 4, v14"); k("s_lshl_b32 s25, s22, 8"); k("v_add_u32 v14, s25, v14")
    lg.wait_all(); k("s_barrier")
    for i in range(4):
        k(f"ds_read_b128 {p4(VR+4*i)}, v{18 if i < 2 else 19} offset:{1024*i}"); lg.issue(("r", i))
    for i in range(4):
        lg.wait([("r", i)]); k(f"s_mov_b32 s25, {i*4*4096}")
        k(f"buffer_store_dwordx4 {p4(VR+4*i)}, v14, s[16:19], s25 offen{ST}")
    k(f"s_branch {end_label}")

def side_conv(k, dbg, end_label):
    vm = Track(k, "vmcnt", 63); lg = Track(k, "lgkmcnt", 15)
    D = Dbg(k, dbg, 2)
    VL = 3
    XP = 256; HP = 32
    XO = 0; HO = XP + 4096; OO = HO + HP + 4096; WB = OO + 4096
    k(f"s_load_dwordx4 s[28:31], s[0:1], {ARG['ssmk']}")
    k(f"s_load_dwordx2 s[36:37], s[0:1], {ARG['ws']}")
    k(f"s_load_dwordx2 s[38:39], s[0:1], {ARG['w3']}")
    D.stamp()
    k("s_sub_u32 s21, s2, 256")
    wave_lane(k, 20, VL, 2)
    k("s_lshl_b32 s22, s21, 2"); k("s_add_u32 s22, s22, s20")
    k("s_lshl_b32 s23, s22, 12"); k(f"v_lshl_add_u32 v4, v{VL}, 4, s23")
    k(f"s_mul_i32 s26, s20, {WB}")
    k("s_lshl_b32 s23, s22, 1"); k("v_mov_b32 v5, s23"); k("v_mov_b32 v6, 0")
    k("v_mov_b32 v8, 0"); k(f"v_lshl_add_u32 v7, v{VL}, 2, s26")
    k("ds_write_b32 v7, v8"); lg.issue("z")
    k(f"v_and_b32 v9, 7, v{VL}"); k("v_lshl_add_u32 v9, v9, 2, s26")
    k(f"ds_write_b32 v9, v8 offset:{HO}"); lg.issue("z")
    k("s_waitcnt lgkmcnt(0)"); lg.done = len(lg.ops)
    srd(k, 4, 36, WS_KV, 4 * MB); srd(k, 8, 28, 0, 4 * MB); srd(k, 12, 30, 0, 2048); srd(k, 16, 36, WS_Y, 4 * MB)
    srd(k, 40, 38, 0, 1024 * 7168); srd(k, 44, 36, WS_AUX + AUX_CS3, 8 * 3584 * 4)
    for i in range(4):
        k(f"s_add_u32 m0, s26, {XO+XP}"); k("s_nop 0")
        k(f"buffer_load_dwordx4 v4, s[4:7], 0 offen offset:{1024*i} lds"); vm.issue(("x", i))
        k(f"s_add_u32 m0, s26, {HO+HP}"); k("s_nop 0")
        k(f"buffer_load_dwordx4 v4, s[8:11], 0 offen offset:{1024*i} lds"); vm.issue(("h", i))
    k("buffer_load_short_d16_hi v6, v5, s[12:15], 0 offen"); vm.issue("D")
    CR = 32
    labc = k.newlab("nocs")
    k("s_cmp_ge_u32 s21, 224"); k("s_cselect_b32 s42, 0, s42")
    k("s_cselect_b32 s46, 0, s46")
    k("s_mul_i32 s24, s21, 2341"); k("s_lshr_b32 s24, s24, 16")
    k("s_mul_i32 s25, s24, 28"); k("s_sub_u32 s25, s21, s25")
    k("s_lshl_b32 s27, s24, 7"); k("s_lshl_b32 s33, s20, 5"); k("s_add_u32 s27, s27, s33")
    k(f"v_lshrrev_b32 v10, 4, v{VL}"); k("v_add_u32 v10, s27, v10"); k("v_mul_u32_u24 v10, 7168, v10")
    k(f"v_and_b32 v11, 15, v{VL}"); k("v_lshl_add_u32 v10, v11, 4, v10")
    k("s_lshl_b32 s27, s25, 8"); k("v_add_u32 v10, s27, v10")
    for i in range(8):
        k(f"s_mov_b32 s27, {i*4*7168}")
        k(f"buffer_load_dwordx4 {p4(CR+4*i)}, v10, s[40:43], s27 offen"); vm.issue("c")
    k(f"v_lshrrev_b32 v12, 4, v{VL}"); k("v_lshlrev_b32 v12, 3, v12")
    k(f"v_bfe_u32 v13, v{VL}, 2, 2"); k("v_add_u32 v12, v12, v13"); k("v_lshlrev_b32 v12, 3, v12")
    k(f"v_and_b32 v13, 3, v{VL}")
    k("v_lshlrev_b32 v14, 5, v13"); k("v_sub_u32 v14, v14, v12"); k(f"s_add_u32 s27, s26, {XO+XP+24-32}"); k("v_add_u32 v14, s27, v14")
    k("v_lshl_add_u32 v15, v13, 3, v12"); k(f"s_add_u32 s27, s26, {HO+HP-24}"); k("v_add_u32 v15, s27, v15")
    k(f"v_lshl_add_u32 v16, v{VL}, 1, s26")
    k(f"v_cmp_lt_u32 s[48:49], 62, v{VL}"); k(f"v_cmp_lt_u32 s[50:51], 61, v{VL}"); k(f"v_cmp_lt_u32 s[52:53], 60, v{VL}")
    AFR = 64; BFR = 192; AC = 20
    def rd_A(d):
        vm.wait([("x", min(3, (64 * d + 63) // 512))])
        for u in range(2):
            k(f"ds_read_b64_tr_b16 {p2(AFR+4*d+2*u)}, v14 offset:{128*d + 32*(1-u)}"); lg.issue(("A", d))
    def rd_B(s):
        vm.wait([("h", min(3, (128 * s + 127) // 512))])
        for u in range(2):
            k(f"ds_read_b64_tr_b16 {p2(BFR+4*s+2*u)}, v15 offset:{256*s + 32*u}"); lg.issue(("B", s))
    XV = [17, 18]; TM = [8, 9, 10, 11, 12, 13]
    for r in XV: k(f"v_mov_b32 v{r}, 0")
    for i in range(4): k(f"v_mov_b32 v{AC+8+i}, 0")
    rd_A(0); rd_B(0); rd_A(1)
    D.stamp()
    vm.wait(["D"])
    def epi(T):
        c = AC + 4 * (T % 3); p = AC + 4 * ((T - 1) % 3); t = TM[3 * (T % 2):]; xv = XV[T % 2]
        L = []
        def rdx(): k(f"ds_read_u16_d16_hi v{xv}, v16 offset:{XO+XP+128*T}"); lg.issue(("xv", T))
        L.append(rdx)
        L.append(lambda: k(f"v_cndmask_b32 v{t[2]}, v{c+3}, v{p+3}, s[52:53]"))
        L.append(lambda: k(f"v_cndmask_b32 v{t[1]}, v{c+2}, v{p+2}, s[50:51]"))
        L.append(lambda: k(f"v_cndmask_b32 v{t[0]}, v{c+1}, v{p+1}, s[48:49]"))
        L.append(lambda: k(f"v_add_f32_dpp v{t[1]}, v{t[2]}, v{t[1]} wave_ror:1 row_mask:0xf bank_mask:0xf"))
        def fx():
            lg.wait([("xv", T)]); k(f"v_fma_f32 v{t[2]}, v{xv}, v6, v{c}"); k("s_nop 0")
        L.append(fx)
        L.append(lambda: k(f"v_add_f32_dpp v{t[0]}, v{t[1]}, v{t[0]} wave_ror:1 row_mask:0xf bank_mask:0xf"))
        L.append(lambda: k("s_nop 1"))
        L.append(lambda: k(f"v_add_f32_dpp v{t[2]}, v{t[0]}, v{t[2]} wave_ror:1 row_mask:0xf bank_mask:0xf"))
        L.append(lambda: k(f"v_cvt_pk_bf16_f32 v{t[2]}, v{t[2]}, v{t[2]}"))
        def wr(): k(f"ds_write_b16 v16, v{t[2]} offset:{OO+128*T}"); lg.issue("o")
        L.append(wr)
        return L
    pend = []
    for T in range(32):
        if T + 2 < 32: rd_A(T + 2)
        if T % 2 == 0 and T // 2 + 1 < 16: rd_B(T // 2 + 1)
        c = AC + 4 * (T % 3)
        ns = T // 2 + 1
        delay = 0
        for st in range(ns):
            lg.wait([("A", T - 2 * st), ("B", st)])
            cin = "0" if st == 0 else p4(c)
            k(f"v_mfma_f32_16x16x32_bf16 {p4(c)}, {p4(AFR+4*(T-2*st))}, {p4(BFR+4*st)}, {cin}")
            if st == 0 and pend: k("s_nop 7")
            for _ in range(2):
                if pend: pend.pop(0)()
        while pend: pend.pop(0)()
        pend = epi(T)
    k("s_nop 7")
    while pend: pend.pop(0)()
    D.stamp()
    lg.wait_all()
    k(f"v_lshl_add_u32 v7, v{VL}, 4, s26")
    for i in range(4):
        k(f"ds_read_b128 {p4(AFR+4*i)}, v7 offset:{OO+1024*i}"); lg.issue(("ob", i))
    for i in range(4):
        lg.wait([("ob", i)])
        k(f"buffer_store_dwordx4 {p4(AFR+4*i)}, v4, s[16:19], 0 offen offset:{1024*i}{ST}")
    vm.wait(["c"])
    U = 96; S = 128
    for i in range(8):
        for j in range(4):
            d = S + 2 * j if i == 0 else U + 2 * j
            k(f"v_lshlrev_b32 v{d}, 16, v{CR+4*i+j}"); k(f"v_and_b32 v{d+1}, 0xffff0000, v{CR+4*i+j}")
        if i:
            for j in range(4): k(f"v_pk_add_f32 {p2(S+2*j)}, {p2(S+2*j)}, {p2(U+2*j)}")
    CSL = 4 * WB
    k("v_lshlrev_b32 v7, 5, v0")
    k(f"ds_write_b128 v7, {p4(S)} offset:{CSL}"); k(f"ds_write_b128 v7, {p4(S+4)} offset:{CSL+16}")
    k("s_waitcnt lgkmcnt(0)"); k("s_barrier")
    k("v_and_b32 v7, 127, v0"); k("v_lshlrev_b32 v7, 2, v7")
    for i in range(16): k(f"ds_read_b32 v{U+i}, v7 offset:{CSL+512*i}")
    k("s_waitcnt lgkmcnt(0)")
    for i in range(1, 16): k(f"v_add_f32 v{U}, v{U}, v{U+i}")
    k("s_mul_i32 s27, s24, 14336"); k("s_lshl_b32 s33, s25, 9"); k("s_add_u32 s27, s27, s33")
    k(f"buffer_store_dword v{U}, v7, s[44:47], s27 offen{ST}")
    D.stamp(); D.flush(36)
    k(f"s_branch {end_label}")
    return CSL + 8192

def gemm3(k, dbg, end_label, mapmode="4x8", NSLOT=5, RA=4, PRO=2):
    NST = 16; ROWB = 7168; STG = 64 * 448; FT = 14
    vm = Track(k, "vmcnt", 63); lg = Track(k, "lgkmcnt", 15)
    D = Dbg(k, dbg, 3)
    ACC = 16; WF = 128; AR = 184; VDMA = 248; VA = 1; VA1 = 14; VL = 3
    CS_LDS = NSLOT * STG
    GQ = []
    k(f"s_load_dwordx4 s[28:31], s[0:1], {ARG['w3']}")
    k(f"s_load_dwordx2 s[32:33], s[0:1], {ARG['ws']}")
    D.stamp()
    tile_map(k, mapmode, 21, 22, 24, 25)
    wave_lane(k, 20, VL, 2)
    k("s_mul_i32 s24, s20, 448"); k("s_mul_i32 s25, s22, 448"); k("s_movk_i32 s26, 2341")
    for i in range(7):
        k(f"v_add_u32 v4, s24, v{VL}")
        if i: k(f"v_add_u32 v4, {64*i}, v4")
        k("v_mul_u32_u24 v5, s26, v4"); k("v_lshrrev_b32 v5, 16, v5")
        k("v_mul_u32_u24 v6, 28, v5"); k("v_sub_u32 v6, v4, v6")
        k("v_bfe_u32 v8, v5, 2, 1"); k("v_lshlrev_b32 v8, 1, v8"); k("v_xor_b32 v6, v6, v8")
        k(f"v_mul_u32_u24 v5, {ROWB}, v5"); k("v_lshl_add_u32 v5, v6, 4, v5")
        k(f"v_add_u32 v{VDMA+i}, s25, v5")
        if i % 4: k(f"v_subrev_u32 v{VDMA+i}, {1024*(i%4)}, v{VDMA+i}")
    k("s_lshl_b32 s23, s21, 3"); k("s_lshl_b32 s24, s20, 1"); k("s_add_u32 s23, s23, s24")
    k("s_lshl_b32 s24, s23, 15"); k(f"v_lshl_add_u32 v{VA}, v{VL}, 4, s24"); k(f"v_add_u32 v{VA1}, 32768, v{VA}")
    k(f"v_lshrrev_b32 v4, 2, v{VL}"); k("v_mul_u32_u24 v4, 448, v4")
    k(f"v_and_b32 v5, 3, v{VL}"); k("v_lshl_add_u32 v4, v5, 3, v4")
    k(f"v_bfe_u32 v5, v{VL}, 4, 1"); k("v_lshlrev_b32 v5, 5, v5")
    k("v_add_u32 v8, v4, v5"); k("v_sub_u32 v9, v4, v5")
    RB = {}; regs = [255, 2, 7, 12, 13, 6]
    for b in range((NSLOT + 1) // 2):
        for par in range(2):
            RB[(b, par)] = regs[2 * b + par]
            k(f"v_add_u32 v{regs[2*b+par]}, {b*2*STG}, v{8+par}")
    k("s_lshl_b32 s24, s23, 11"); k(f"v_lshl_add_u32 v4, v{VL}, 4, s24")
    k("s_mul_i32 s25, s22, 896"); k("v_lshl_add_u32 v5, v0, 2, s25")
    k("s_mul_i32 s27, s20, 7168")
    k("s_waitcnt lgkmcnt(0)")
    srd(k, 4, 32, WS_X1, 4 * MB); srd(k, 8, 28, 0, 1024 * 7168); srd(k, 12, 32, WS_G3, 14 * MB); srd(k, 16, 32, WS_AUX, AUX_SIZE)
    srd(k, 36, 30, 0, 3584 * 2048)
    k("s_mov_b32 s24, 0"); k("s_mov_b32 s25, 0")
    def dma_w(s, i):
        if i % 4 == 0:
            k(f"s_add_u32 m0, s27, {(s % NSLOT)*STG + (i//4)*4096}"); k("s_nop 0")
        k(f"buffer_load_dwordx4 v{VDMA+i}, s[8:11], s25 offen offset:{1024*(i%4)} lds"); vm.issue(("W", s))
        if i == 6: k(f"s_add_u32 s25, s25, {64*ROWB}")
    def load_a(s, ks, mt):
        r = AR + (s % RA) * 16 + 8 * ks + 4 * mt
        k(f"buffer_load_dwordx4 {p4(r)}, v{VA if mt == 0 else VA1}, s[4:7], s24 offen offset:{1024*ks}"); vm.issue(("A", s, ks))
        if ks == 1 and mt == 1: k("s_add_u32 s24, s24, 2048")
    def rd_w(s, ks, t, u):
        slot = s % NSLOT
        off = (slot % 2) * STG + (32 * ks + 16 * u) * 448 + 32 * t
        k(f"ds_read_b64_tr_b16 {p2(WF+4*t+2*u)}, v{RB[(slot//2, t%2)]} offset:{off}"); lg.issue(("R", s, ks, t))
    for i in range(7): dma_w(0, i)
    for ks in range(2):
        for mt in range(2): load_a(0, ks, mt)
    STR = ACC; CSR = ACC + 16
    for mt in range(2):
        for i in range(2):
            k(f"buffer_load_dwordx4 {p4(STR+8*mt+4*i)}, v4, s[16:19], 0 offen offset:{AUX_ST2+2048*mt+1024*i}"); vm.issue("ST")
    for i in range(8):
        k(f"s_mov_b32 s26, {AUX_CS3 + i*14336}")
        k(f"buffer_load_dword v{CSR+i}, v5, s[16:19], s26 offen"); vm.issue("ST")
    for s in range(1, max(NSLOT, RA)):
        tgt = (lambda f: f()) if s < PRO else GQ.append
        if s < NSLOT:
            for i in range(7): tgt(lambda s=s, i=i: dma_w(s, i))
        if s < RA:
            for ks in range(2):
                for mt in range(2): tgt(lambda s=s, ks=ks, mt=mt: load_a(s, ks, mt))
    vm.wait(["ST"])
    SV = [8, 10]
    for i in range(1, 8): k(f"v_add_f32 v{CSR}, v{CSR}, v{CSR+i}")
    k("v_lshlrev_b32 v5, 2, v0"); k(f"v_add_u32 v5, {CS_LDS}, v5")
    k(f"ds_write_b32 v5, v{CSR}"); lg.issue("cs")
    for mt in range(2):
        r = STR + 8 * mt
        for i in range(1, 8): k(f"v_add_f32 v{r}, v{r}, v{r+i}")
        k(f"v_mov_b32 v{r+1}, v{r}"); k("s_nop 1"); k(f"v_permlane32_swap_b32 v{r}, v{r+1}"); k("s_nop 1")
        k(f"v_add_f32 v{r}, v{r}, v{r+1}"); k(f"v_mov_b32 v{r+1}, v{r}"); k("s_nop 1")
        k(f"v_permlane16_swap_b32 v{r}, v{r+1}"); k("s_nop 1")
        k(f"v_mul_f32 v{SV[mt]}, {hx32(1/1024)}, v{r}"); k(f"v_mul_f32 v4, {hx32(1/1024)}, v{r+1}")
        k(f"v_fma_f32 v4, -v{SV[mt]}, v{SV[mt]}, v4"); k("v_max_f32 v4, 0, v4"); k(f"v_add_f32 v4, {hx32(1e-5)}, v4")
        k(f"v_rsq_f32 v{SV[mt]+1}, v4")
    lg.wait_all()
    vm.wait([("W", 0)]); k("s_barrier")
    D.stamp()
    for t in range(FT):
        for u in range(2): rd_w(0, 0, t, u)
    def touch_w4():
        k("s_lshl_b32 s26, s2, 8"); k("v_add_u32 v4, s26, v0"); k("v_lshlrev_b32 v4, 7, v4")
        k("buffer_load_dword v5, v4, s[36:39], 0 offen"); vm.issue("touch")
    for s in range(NST):
        for ks in range(2):
            last = (s == NST - 1 and ks == 1)
            ns, nk = (s, 1) if ks == 0 else (s + 1, 0)
            vm.wait([("A", s, ks)])
            for t in range(FT):
                if ks == 1 and t == 0 and s + 1 < NST:
                    vm.wait([("W", s + 1)]); k("s_barrier")
                    if s >= 1 and s - 1 + NSLOT < NST:
                        for i in range(7): GQ.append(lambda s=s, i=i: dma_w(s - 1 + NSLOT, i))
                lg.wait([("R", s, ks, t)])
                for mt in range(2):
                    a = WF + 4 * t; b = AR + (s % RA) * 16 + 8 * ks + 4 * mt; c = ACC + 8 * t + 4 * mt
                    cin = "0" if (s == 0 and ks == 0) else p4(c)
                    k(f"v_mfma_f32_16x16x32_bf16 {p4(c)}, {p4(a)}, {p4(b)}, {cin}")
                    if t > 0 and not last: rd_w(ns, nk, t - 1, mt)
                if GQ and (t % 2 == 1 or len(GQ) > 8): GQ.pop(0)()
            if not last: rd_w(ns, nk, FT - 1, 0); rd_w(ns, nk, FT - 1, 1)
            if s + RA < NST:
                for mt in range(2): GQ.append(lambda s=s, ks=ks, mt=mt: load_a(s + RA, ks, mt))
            if s == NST - RA and ks == 0: GQ.append(touch_w4)
    assert not GQ
    D.stamp()
    P = AR + 32
    for mt in range(2): gelu_consts(k, SV[mt] + 1, SV[mt], P + 4 * mt, P + 4 * mt + 2, 4)
    k(f"v_lshrrev_b32 v4, 4, v{VL}"); k("v_lshlrev_b32 v4, 4, v4"); k(f"v_add_u32 v4, {CS_LDS}, v4")
    k("s_mul_i32 s24, s23, 114688"); k("s_mul_i32 s25, s22, 7168"); k("s_add_u32 s24, s24, s25")
    k(f"v_lshl_add_u32 v6, v{VL}, 4, s24"); k("v_add_u32 v7, 114688, v6")
    CS = WF; T = WF + 16; PK = AR
    def rd_cs(p):
        for h in range(2):
            k(f"ds_read_b128 {p4(CS+(p%2)*8+4*h)}, v4 offset:{128*p+64*h}"); lg.issue(("C", p))
    rd_cs(0)
    for p in range(7):
        if p + 1 < 7: rd_cs(p + 1)
        lg.wait([("C", p)])
        items = [(ACC + 8 * (2 * p + j) + 4 * mt + 2 * h, CS + (p % 2) * 8 + 4 * j + 2 * h, P + 4 * mt, P + 4 * mt + 2)
                 for mt in range(2) for j in range(2) for h in range(2)]
        gelu_block(k, items, T)
        pk = PK + (p % 2) * 8
        for i, it in enumerate(items): k(f"v_cvt_pk_bf16_f32 v{pk+i}, v{it[0]}, v{it[0]+1}")
        k(f"s_mov_b32 s26, {1024*p}")
        for mt in range(2): k(f"buffer_store_dwordx4 {p4(pk+4*mt)}, v{6+mt}, s[12:15], s26 offen{ST}")
    D.stamp(); D.flush(32)
    k(f"s_branch {end_label}")
    return NSLOT * STG + 1024

def build(path, dbg=False, opts=None):
    o = dict(map1="4x8", map2="4x8", map3="4x8", map4="4x8"); o.update(opts or {})
    kerns = []; launches = []
    def two_role(name, main, side):
        k = Kern(name, vgpr=256)
        k(f"s_cmp_ge_u32 s2, {512 if side else 256}"); k(f"s_cbranch_scc1 {name}_end0")
        if side:
            k("s_cmp_ge_u32 s2, 256"); k(f"s_cbranch_scc1 {name}_side")
        k(f"s_branch {name}_main")
        k.label(f"{name}_end0"); k("s_endpgm")
        lds = 0
        if side:
            k.label(f"{name}_side"); lds = side(k, f"{name}_end") or 0
        k.label(f"{name}_main"); lds = max(lds, main(k, f"{name}_end"))
        k.label(f"{name}_end"); k("s_endpgm")
        kerns.append(k); launches.append((name, 512 if side else 256, 256, lds))
    two_role("k1_kernel", lambda k, e: gemm1(k, dbg, e, o["map1"]), lambda k, e: side_kv(k, e))
    two_role("k2_kernel", lambda k, e: gemm64(k, 2, dbg, e, o["map2"]), lambda k, e: side_conv(k, dbg, e))
    two_role("k3_kernel", lambda k, e: gemm3(k, dbg, e, o["map3"]), None)
    two_role("k4_kernel", lambda k, e: gemm64(k, 4, dbg, e, o["map4"]), None)
    hdr = "".join(l for l in open("ref_hdr.s").readlines()[:15])
    emit_file(path, hdr, launches, kerns)
    return launches

if __name__ == "__main__":
    print(build(sys.argv[1] if len(sys.argv) > 1 else "full.s", dbg=(len(sys.argv) > 2)))
```

```python
import sys
from asmlib import *

MB = 1 << 20
OPT = {}
WS_H   = 0 * MB
WS_X1  = 4 * MB
WS_G3  = 8 * MB
WS_KV  = 24 * MB
WS_Y   = WS_KV
WS_AUX = 32 * MB
WS_XCH = 36 * MB
AUX_ST2 = 0
AUX_ST1 = 256 * 1024
AUX_CS3 = 512 * 1024
AUX_CS1 = 640 * 1024
AUX_FLG = 768 * 1024
FLG_BYTES = 256 * 1024
AUX_DBG = 1 * MB
AUX_SIZE = 4 * MB
C0 = 2.0 * 0.7978845608028654 * 1.4426950408889634
C1 = C0 * 0.044715
LOG2E = 1.4426950408889634
ARG = dict(q=0, k=8, v=16, shk=24, ssmk=32, ssmD=40, w1=56, w2=64, w3=72, w4=80, out=88, dbg=96, ws=104)

class Track:
    def __init__(self, k, name, maxn):
        self.k = k; self.name = name; self.maxn = maxn; self.ops = []; self.done = 0
    def issue(self, tag=None): self.ops.append(tag)
    def wait(self, tags):
        last = -1
        for i in range(len(self.ops) - 1, -1, -1):
            if self.ops[i] in tags: last = i; break
        assert last >= 0, f"wait on never-issued op {tags}"
        n = last + 1
        if n <= self.done: return
        allowed = min(len(self.ops) - n, self.maxn)
        self.k(f"s_waitcnt {self.name}({allowed})")
        self.done = len(self.ops) - allowed
    def wait_all(self):
        if self.done < len(self.ops):
            self.k(f"s_waitcnt {self.name}(0)"); self.done = len(self.ops)

def srd(k, d, base, off, size):
    if off:
        k(f"s_add_u32 s{d}, s{base}, {off}"); k(f"s_addc_u32 s{d+1}, s{base+1}, 0")
    else:
        k(f"s_mov_b32 s{d}, s{base}"); k(f"s_mov_b32 s{d+1}, s{base+1}")
    k(f"s_mov_b32 s{d+2}, {size}"); k(f"s_mov_b32 s{d+3}, 0x20000")

def tile_map(k, mode, s_rb, s_cb, t0, t1):
    k(f"s_and_b32 s{t0}, s2, 7"); k(f"s_lshr_b32 s{t1}, s2, 3"); k(f"s_and_b32 s{t1}, s{t1}, 31")
    lr, lc = {"2x16": (1, 4), "4x8": (2, 3), "8x4": (3, 2)}[mode]
    xc = 4 - lc
    k(f"s_lshr_b32 s{s_rb}, s{t0}, {xc}"); k(f"s_lshl_b32 s{s_rb}, s{s_rb}, {lr}")
    k(f"s_lshr_b32 s{s_cb}, s{t1}, {lc}"); k(f"s_add_u32 s{s_rb}, s{s_rb}, s{s_cb}")
    k(f"s_and_b32 s{s_cb}, s{t0}, {(1<<xc)-1}"); k(f"s_lshl_b32 s{s_cb}, s{s_cb}, {lc}")
    k(f"s_and_b32 s{t1}, s{t1}, {(1<<lc)-1}"); k(f"s_add_u32 s{s_cb}, s{s_cb}, s{t1}")

class Dbg:
    def __init__(self, k, on, slot): self.k = k; self.on = on; self.n = 0; self.slot = slot
    def stamp(self):
        if not self.on: return
        i = self.n; self.n += 1
        self.k("s_memtime s[80:81]"); self.k("s_memrealtime s[82:83]"); self.k("s_waitcnt lgkmcnt(0)"); self.k(f"s_mov_b32 s{84+i}, s80"); self.k(f"s_mov_b32 s{90+i}, s82")
    def flush(self, ws):
        if not self.on: return
        k = self.k
        k("s_waitcnt vmcnt(0)"); self.stamp(); k("s_waitcnt lgkmcnt(0)")
        srd(k, 96, ws, WS_AUX + AUX_DBG + self.slot * 131072, 131072)
        k("v_lshrrev_b32 v1, 6, v0"); k("s_lshl_b32 s63, s2, 3"); k("v_add_u32 v1, s63, v1"); k("v_lshlrev_b32 v1, 6, v1")
        for i in range(self.n):
            k(f"v_mov_b32 v2, s{84+i}"); k(f"buffer_store_dword v2, v1, s[96:99], 0 offen offset:{4*i}")
            k(f"v_mov_b32 v2, s{90+i}"); k(f"buffer_store_dword v2, v1, s[96:99], 0 offen offset:{32+4*i}")

def p2(r): return f"v[{r}:{r+1}]"
def p4(r): return f"v[{r}:{r+3}]"

def gelu_block(k, items, T):
    n = len(items)
    for (c, cs, P0, P1) in items: k(f"v_pk_fma_f32 {p2(c)}, {p2(cs)}, {p2(P0)}, {p2(c)} op_sel_hi:[1,0,1]")
    for i, (c, cs, P0, P1) in enumerate(items): k(f"v_pk_mul_f32 {p2(T+2*i)}, {p2(c)}, {p2(c)}")
    for i, (c, cs, P0, P1) in enumerate(items): k(f"v_pk_fma_f32 {p2(T+2*i)}, {p2(T+2*i)}, {p2(P1)}, {p2(P1)} op_sel:[0,0,1] op_sel_hi:[1,0,1]")
    for i, (c, cs, P0, P1) in enumerate(items): k(f"v_pk_mul_f32 {p2(T+2*i)}, {p2(T+2*i)}, {p2(c)}")
    for i in range(2 * n): k(f"v_exp_f32 v{T+i}, v{T+i}")
    for i, (c, cs, P0, P1) in enumerate(items): k(f"v_pk_fma_f32 {p2(T+2*i)}, {p2(T+2*i)}, {p2(P0)}, {p2(P0)} op_sel:[0,1,1] op_sel_hi:[1,1,1]")
    for i in range(2 * n): k(f"v_rcp_f32 v{T+i}, v{T+i}")
    for i, (c, cs, P0, P1) in enumerate(items): k(f"v_pk_mul_f32 {p2(c)}, {p2(c)}, {p2(T+2*i)}")

def gelu_consts(k, vR, vmean, P0, P1, t):
    k(f"v_sub_f32 v{P0}, 0, v{vmean}")
    k(f"v_rcp_f32 v{P0+1}, v{vR}")
    k(f"v_mul_f32 v{t}, v{vR}, v{vR}")
    k(f"v_mul_f32 v{P1+1}, {hx32(-C0)}, v{vR}")
    k(f"v_mul_f32 v{t}, {hx32(0.044715)}, v{t}")
    k(f"v_mul_f32 v{P1}, v{t}, v{P1+1}")

def wave_lane(k, s_w, v_lane, vt):
    k(f"v_lshrrev_b32 v{vt}, 6, v0"); k(f"v_and_b32 v{v_lane}, 63, v0"); k(f"v_readfirstlane_b32 s100, v{vt}"); k("s_nop 0")
    k(f"s_and_b32 s{s_w}, s100, 3"); k("s_lshr_b32 s3, s100, 2")

ST = " sc1"

def spin_wait(k, vm, tag, vdst, vaddr, srd_, soff, need):
    ok = k.newlab("fok"); sp = k.newlab("fsp")
    vm.wait([tag])
    k("s_mov_b32 s57, 0")
    k.label(sp)
    k(f"v_readfirstlane_b32 s56, v{vdst}"); k("s_nop 0"); k(f"s_cmp_ge_u32 s56, {need}"); k(f"s_cbranch_scc1 {ok}")
    k("s_add_u32 s57, s57, 1"); k(f"s_cmp_ge_u32 s57, {1<<18}"); k(f"s_cbranch_scc1 {ok}")
    k("s_sleep 2"); k(f"buffer_load_dword v{vdst}, v{vaddr}, s[{srd_}:{srd_+3}], {soff} offen sc1"); k("s_waitcnt vmcnt(0)"); k(f"s_branch {sp}")
    k.label(ok)

def unpack(k, dst, src):
    k(f"v_lshlrev_b32 v{dst}, 16, v{src}"); k(f"v_and_b32 v{dst+1}, 0xffff0000, v{src}")

def qtile_addr(k, VL, s_tb, s_cb, vq_even, vq_odd, t):
    k(f"v_lshrrev_b32 v{t}, 3, v{VL}"); k(f"v_and_b32 v{t+1}, 7, v{VL}")
    k(f"v_lshrrev_b32 v{t+2}, 4, v{VL}"); k(f"v_xor_b32 v{t+2}, v{t+2}, v{t+1}")
    k(f"s_lshl_b32 s24, s{s_tb}, 4"); k(f"v_add_u32 v{t+3}, s24, v{t}"); k(f"v_lshlrev_b32 v{t+3}, 11, v{t+3}")
    k(f"s_lshl_b32 s24, s{s_cb}, 7"); k(f"v_add_u32 v{t+3}, s24, v{t+3}")
    k(f"v_lshl_add_u32 v{vq_even}, v{t+2}, 4, v{t+3}")
    k(f"v_xor_b32 v{t+2}, 4, v{t+2}"); k(f"v_lshl_add_u32 v{vq_odd}, v{t+2}, 4, v{t+3}")

def qtile_rd_addr(k, VL, s_base, dst, t):
    k(f"v_and_b32 v{t}, 15, v{VL}"); k(f"v_lshlrev_b32 v{t+1}, 7, v{t}")
    k(f"v_bfe_u32 v{t+2}, v{VL}, 4, 1"); k(f"v_lshl_add_u32 v{t+1}, v{t+2}, 3, v{t+1}")
    k(f"v_add_u32 v{t+1}, s{s_base}, v{t+1}")
    k(f"v_lshrrev_b32 v{t}, 1, v{t}"); k(f"v_lshrrev_b32 v{t+2}, 5, v{VL}"); k(f"v_xor_b32 v{t}, v{t}, v{t+2}")
    for j in range(4):
        k(f"v_xor_b32 v{t+2}, {2*j}, v{t}"); k(f"v_lshl_add_u32 v{dst+j}, v{t+2}, 4, v{t+1}")


def pa4(r): return f"a[{r}:{r+3}]"

def half_map(k, s_rb, s_cb, t0, t1):
    k(f"s_and_b32 s{t0}, s2, 7"); k(f"s_lshr_b32 s{t1}, s2, 3"); k(f"s_and_b32 s{t1}, s{t1}, 15")
    k(f"s_lshr_b32 s{s_rb}, s{t0}, 1"); k(f"s_lshl_b32 s{s_rb}, s{s_rb}, 2"); k(f"s_lshr_b32 s{s_cb}, s{t1}, 2"); k(f"s_add_u32 s{s_rb}, s{s_rb}, s{s_cb}")
    k(f"s_and_b32 s{s_cb}, s{t0}, 1"); k(f"s_lshl_b32 s{s_cb}, s{s_cb}, 2"); k(f"s_and_b32 s{t1}, s{t1}, 3"); k(f"s_add_u32 s{s_cb}, s{s_cb}, s{t1}")

def publish(k, vm, VL, srd_, soff):
    vm.wait_all(); k("s_barrier")
    lab = k.newlab("pub")
    k("s_cmp_lg_u32 s100, 0"); k(f"s_cbranch_scc1 {lab}")
    k(f"v_lshlrev_b32 v4, 20, v{VL}"); k("v_mov_b32 v5, 1")
    k(f"buffer_atomic_add v5, v4, s[{srd_}:{srd_+3}], {soff} offen sc1")
    k.label(lab)

def colsum_reduce(k, vm, regs, tags, CL, U, S, srd_out, s_off, split):
    for i, r in enumerate(regs):
        tags[i]()
        for j in range(4): unpack(k, S + 2 * j if i == 0 else U + 2 * j, r + j)
        if i:
            for j in range(4): k(f"v_pk_add_f32 {p2(S+2*j)}, {p2(S+2*j)}, {p2(U+2*j)}")
    k("v_lshlrev_b32 v4, 5, v0"); k(f"v_add_u32 v4, {CL}, v4")
    k(f"ds_write_b128 v4, {p4(S)}"); k(f"ds_write_b128 v4, {p4(S+4)} offset:16")
    k("s_waitcnt lgkmcnt(0)"); k("s_barrier")
    k("v_and_b32 v4, 127, v0"); k("v_lshlrev_b32 v4, 2, v4"); k(f"v_add_u32 v5, {CL}, v4")
    if split: k("s_lshl_b32 s101, s3, 13"); k("v_add_u32 v5, s101, v5")
    np_ = 16 if split else 32
    for i in range(np_): k(f"ds_read_b32 v{U+i}, v5 offset:{512*i}")
    k("s_waitcnt lgkmcnt(0)")
    for i in range(1, np_): k(f"v_add_f32 v{U}, v{U}, v{U+i}")
    k(f"buffer_store_dword v{U}, v4, s[{srd_out}:{srd_out+3}], {s_off} offen{ST}"); vm.issue("st")


def code_warm(k, vm, VL, lo, hi, S, vt, per=32, fwd=True, mask=31):
    lab = k.newlab("pc")
    k(f"s_getpc_b64 s[{S}:{S+1}]"); k.label(lab)
    k(f"s_add_u32 s{S}, s{S}, {lo}-{lab}"); k(f"s_addc_u32 s{S+1}, s{S+1}, {'0' if fwd else '-1'}")
    k(f"s_mov_b32 s{S+2}, {hi}-{lo}"); k(f"s_mov_b32 s{S+3}, 0x20000")
    k("s_lshr_b32 s24, s2, 3"); k(f"s_and_b32 s24, s24, {mask}"); k(f"s_mul_i32 s24, s24, {per*128}")
    k("s_cmp_lg_u32 s20, 3"); k(f"s_cselect_b32 s{S+2}, 0, s{S+2}")
    k(f"v_cmp_gt_u32 vcc, {per}, v{VL}"); k(f"v_lshlrev_b32 v{vt}, 7, v{VL}"); k(f"v_mov_b32 v{vt+1}, 0x80000000")
    k(f"v_cndmask_b32 v{vt}, v{vt+1}, v{vt}, vcc")
    k(f"buffer_load_dword v{vt+1}, v{vt}, s[{S}:{S+3}], s24 offen"); vm.issue("cw")

W8 = True
VL = 3

class Loader:
    def __init__(self, k, tag):
        self.k = Kern(k.name + "_" + tag); self.vm = Track(self.k, "vmcnt", 63); self.lg = Track(self.k, "lgkmcnt", 15)
        self.lab = k.name + "_" + tag
    def append_to(self, k):
        self.k("s_endpgm"); k.label(self.lab); k.L += self.k.L

def side1(k, dbg, end_label):
    vm = Track(k, "vmcnt", 63); lg = Track(k, "lgkmcnt", 15); D = Dbg(k, dbg, 1)
    k(f"s_load_dwordx4 s[28:31], s[0:1], {ARG['q']}")
    k(f"s_load_dwordx4 s[32:35], s[0:1], {ARG['v']}")
    k(f"s_load_dwordx4 s[36:39], s[0:1], {ARG['w1']}")
    k(f"s_load_dwordx4 s[40:43], s[0:1], {ARG['dbg']}")
    k(f"s_load_dwordx2 s[44:45], s[0:1], {ARG['ssmk']}")
    D.stamp()
    wave_lane(k, 20, VL, 2)
    k("s_and_b32 s21, s2, 7"); k("s_lshr_b32 s22, s2, 3")
    k("s_lshl_b32 s23, s21, 8"); k("s_lshl_b32 s24, s22, 4"); k("s_add_u32 s23, s23, s24"); k("s_lshl_b32 s24, s100, 1"); k("s_add_u32 s23, s23, s24")
    k("s_lshl_b32 s24, s23, 11"); k(f"v_lshl_add_u32 v6, v{VL}, 4, s24")
    k("s_and_b32 s25, s21, 1"); k("s_lshl_b32 s25, s25, 2"); k("s_lshr_b32 s24, s21, 1"); k("s_add_u32 s25, s25, s24")
    k("s_lshl_b32 s24, s22, 6"); k("s_lshl_b32 s26, s100, 3"); k("s_add_u32 s24, s24, s26")
    k(f"v_lshrrev_b32 v7, 4, v{VL}"); k("v_add_u32 v7, s24, v7"); k("v_lshlrev_b32 v7, 11, v7")
    k(f"v_and_b32 v8, 15, v{VL}"); k("v_lshl_add_u32 v7, v8, 4, v7"); k("s_lshl_b32 s24, s25, 8"); k("v_add_u32 v7, s24, v7")
    k("s_waitcnt lgkmcnt(0)")
    srd(k, 4, 28, 0, 4 * MB); srd(k, 8, 36, 0, 2 * MB)
    QR = 32; CR = 64
    code_warm(k, vm, VL, "k1_kernel", "code_end", 72, 252, 32, fwd=False)
    for r in range(2):
        for h in range(2):
            k(f"buffer_load_dwordx4 {p4(QR+8*r+4*h)}, v6, s[4:7], 0 offen offset:{2048*r+1024*h}"); vm.issue(("q", r))
    k("s_movk_i32 s27, 8192")
    for n in range(2):
        k(f"buffer_load_dwordx4 {p4(CR+4*n)}, v7, s[8:11], {'s27' if n else '0'} offen"); vm.issue(("c", n))
    srd(k, 12, 42, WS_AUX, AUX_SIZE); srd(k, 16, 40, 0, 256)
    srd(k, 48, 30, 0, 4 * MB); srd(k, 52, 32, 0, 4 * MB); srd(k, 56, 34, 0, 8192); srd(k, 60, 42, WS_KV, 4 * MB)
    srd(k, 64, 38, 0, 2 * MB); srd(k, 68, 44, 0, 4 * MB)
    k("s_lshl_b32 s24, s2, 11"); k(f"s_add_u32 s24, s24, {AUX_FLG}"); k("v_lshl_add_u32 v12, v0, 2, s24"); k("v_mov_b32 v14, 0")
    k("buffer_store_dword v14, v12, s[12:15], 0 offen"); vm.issue("z")
    k("s_lshl_b32 s47, s21, 1"); k("s_add_u32 s47, s47, s3")
    k(f"v_and_b32 v26, 7, v{VL}"); k(f"v_lshrrev_b32 v27, 3, v{VL}")
    k("s_lshl_b32 s26, s22, 7"); k("s_lshl_b32 s27, s20, 5"); k("s_add_u32 s26, s26, s27")
    k("v_lshl_add_u32 v28, v27, 2, s26")
    k("v_lshlrev_b32 v29, 11, v28"); k("v_lshl_add_u32 v29, v26, 4, v29")
    k("s_lshl_b32 s26, s47, 7"); k("v_add_u32 v29, s26, v29")
    k("v_subrev_u32 v30, 6144, v29"); k("v_cmp_eq_u32 vcc, 0, v28"); k("v_mov_b32 v28, 0x80000000")
    k("s_lshl_b32 s26, s47, 9"); k("v_lshl_add_u32 v31, v26, 6, s26")
    k("v_cndmask_b32 v30, v30, v28, vcc")
    k("s_movk_i32 s46, 4096")
    KR = 188; VR = 216; SK = 232
    def kv_loads():
        for i in range(4): k(f"buffer_load_dwordx4 {p4(SK+4*i)}, v31, s[56:59], 0 offen offset:{16*i}"); vm.issue("sk")
        for d in range(7):
            base, dd = (30, d) if d < 3 else (29, d - 3)
            k(f"buffer_load_dwordx4 {p4(KR+4*d)}, v{base}, s[48:51], {'s46' if dd >= 2 else '0'} offen offset:{2048*(dd%2)}"); vm.issue(("k", d))
        for d in range(4):
            k(f"buffer_load_dwordx4 {p4(VR+4*d)}, v29, s[52:55], {'s46' if d >= 2 else '0'} offen offset:{2048*(d%2)}"); vm.issue(("v", d))
    def later():
        k("s_lshl_b32 s24, s2, 3"); k("s_add_u32 s24, s24, s100")
        if OPT.get("ssm1", 1):
            k(f"v_lshrrev_b32 v8, 5, v{VL}"); k("v_lshlrev_b32 v8, 24, v8"); k(f"v_lshl_add_u32 v8, v{VL}, 7, v8"); k("s_lshl_b32 s26, s24, 12")
            k("buffer_load_dword v9, v8, s[68:71], s26 offen"); vm.issue("t")
        if OPT.get("w2x", 1):
            k("s_lshl_b32 s26, s22, 3"); k("s_add_u32 s26, s26, s100"); k("s_lshl_b32 s26, s26, 14"); k("s_and_b32 s27, s21, 1"); k("s_lshl_b32 s27, s27, 10"); k("s_add_u32 s26, s26, s27")
            k(f"v_lshrrev_b32 v8, 3, v{VL}"); k("v_lshlrev_b32 v8, 11, v8"); k(f"v_and_b32 v10, 7, v{VL}"); k("v_lshl_add_u32 v8, v10, 7, v8")
        else:
            k(f"v_lshrrev_b32 v8, 4, v{VL}"); k("v_lshlrev_b32 v8, 24, v8"); k(f"v_lshl_add_u32 v8, v{VL}, 7, v8"); k("s_lshl_b32 s26, s24, 11")
        k("buffer_load_dword v9, v8, s[64:67], s26 offen"); vm.issue("t")
    U = 96
    def wave_sum(R, n):
        for ctl in ["quad_perm:[1,0,3,2]", "quad_perm:[2,3,0,1]", "row_half_mirror", "row_mirror"]:
            for r in range(n): k(f"v_add_f32_dpp v{R+r}, v{R+r}, v{R+r} {ctl} row_mask:0xf bank_mask:0xf")
            k("s_nop 0")
        for sw in ["v_permlane16_swap_b32", "v_permlane32_swap_b32"]:
            for r in range(n): k(f"v_mov_b32 v{R+n+r}, v{R+r}")
            k("s_nop 1")
            for r in range(n): k(f"{sw} v{R+r}, v{R+n+r}")
            k("s_nop 1")
            for r in range(n): k(f"v_add_f32 v{R+r}, v{R+r}, v{R+n+r}")
            k("s_nop 1")
    SM = 16; SQ = 20; T2 = 160
    for r in range(2):
        vm.wait([("q", r)])
        for j in range(8): unpack(k, U + 16 * r + 2 * j, QR + 8 * r + j)
        k(f"v_pk_add_f32 {p2(T2+2*r)}, {p2(U+16*r)}, {p2(U+16*r+2)}")
        for j in range(2, 8): k(f"v_pk_add_f32 {p2(T2+2*r)}, {p2(T2+2*r)}, {p2(U+16*r+2*j)}")
    if OPT.get("kvearly", 1): vm.wait([("c", 1)]); kv_loads()
    for r in range(2): k(f"v_add_f32 v{SM+r}, v{T2+2*r}, v{T2+2*r+1}")
    k("s_nop 1"); wave_sum(SM, 2)
    for r in range(2): k(f"v_mul_f32 v{T2+8+2*r}, {hx32(-1/1024)}, v{SM+r}")
    for r in range(2):
        for j in range(8): k(f"v_pk_add_f32 {p2(U+16*r+2*j)}, {p2(U+16*r+2*j)}, {p2(T2+8+2*r)} op_sel_hi:[1,0]")
        k(f"v_pk_mul_f32 {p2(T2+2*r)}, {p2(U+16*r)}, {p2(U+16*r)}")
        for j in range(1, 8): k(f"v_pk_fma_f32 {p2(T2+2*r)}, {p2(U+16*r+2*j)}, {p2(U+16*r+2*j)}, {p2(T2+2*r)}")
    for r in range(2): k(f"v_add_f32 v{SQ+r}, v{T2+2*r}, v{T2+2*r+1}")
    k("s_nop 1"); wave_sum(SQ, 2)
    k(f"v_cmp_eq_u32 vcc, 1, v{VL}"); k("s_nop 1")
    k(f"v_cndmask_b32 v{SM}, v{SM}, v{SM+1}, vcc"); k(f"v_cndmask_b32 v{SQ}, v{SQ}, v{SQ+1}, vcc")
    k(f"v_mul_f32 v10, {hx32(1/1024)}, v{SM}")
    k(f"v_mov_b32 v12, {hx32(1e-5)}"); k(f"v_fmac_f32 v12, {hx32(1/1024)}, v{SQ}"); k("v_rsq_f32 v11, v12")
    k("s_lshl_b32 s24, s23, 3"); k(f"s_add_u32 s24, s24, {AUX_ST1}")
    k(f"v_lshrrev_b32 v8, 1, v{VL}"); k("v_lshlrev_b32 v8, 22, v8"); k(f"v_lshl_add_u32 v8, v{VL}, 3, v8")
    k(f"buffer_store_dwordx2 v[10:11], v8, s[12:15], s24 offen{ST}"); vm.issue("st")
    k("s_lshl_b32 s24, s22, 12"); k("s_lshl_b32 s26, s25, 9"); k("s_add_u32 s24, s24, s26"); k(f"s_add_u32 s24, s24, {AUX_CS1}")
    colsum_reduce(k, vm, [CR, CR + 4], [lambda n=n: vm.wait([("c", n)]) for n in range(2)], 0, 96, 128, 12, "s24", False)
    publish(k, vm, VL, 16, "0")
    D.stamp()
    if not OPT.get("kvearly", 1): kv_loads()
    later()
    k("s_lshl_b32 s27, s3, 14"); k("s_add_u32 s27, s27, 16384")
    k("v_lshrrev_b32 v13, 1, v27"); k("s_lshl_b32 s26, s20, 2"); k("v_add_u32 v13, s26, v13"); k("v_xor_b32 v13, v13, v26")
    k("v_lshlrev_b32 v13, 4, v13"); k("v_lshl_add_u32 v13, v26, 11, v13")
    k("v_and_b32 v14, 1, v27"); k("v_lshl_add_u32 v13, v14, 3, v13"); k("v_add_u32 v13, s27, v13")
    k(f"v_lshrrev_b32 v14, 4, v{VL}"); k("s_lshl_b32 s26, s20, 4"); k("v_add_u32 v14, s26, v14")
    k(f"v_and_b32 v15, 15, v{VL}"); k("s_lshl_b32 s26, s20, 1"); k("v_xor_b32 v16, s26, v15")
    k("v_lshlrev_b32 v17, 8, v14"); k("v_add_u32 v17, s27, v17"); k("v_lshl_add_u32 v18, v16, 4, v17")
    k("v_xor_b32 v16, 1, v16"); k("v_lshl_add_u32 v19, v16, 4, v17")
    k("s_lshl_b32 s26, s47, 6"); k("v_add_u32 v14, s26, v14"); k("v_lshlrev_b32 v14, 12, v14")
    k("v_lshl_add_u32 v14, v15, 4, v14"); k("s_lshl_b32 s26, s22, 8"); k("v_add_u32 v14, s26, v14")
    WW = 32; UK = 64; UV = 120; O = 152
    vm.wait(["sk"])
    for e in range(8):
        for d in range(4):
            src = SK + 2 * e + d // 2; dst = WW + 8 * d + e
            k(f"v_lshlrev_b32 v{dst}, 16, v{src}" if d % 2 == 0 else f"v_and_b32 v{dst}, 0xffff0000, v{src}")
    for d in range(7):
        vm.wait([("k", d)])
        for j in range(4): unpack(k, UK + 8 * d + 2 * j, KR + 4 * d + j)
    for tk in range(4):
        for j in range(4): k(f"v_pk_mul_f32 {p2(O+8*tk+2*j)}, {p2(UK+8*(tk+3)+2*j)}, {p2(WW+2*j)}")
        for d in range(1, 4):
            for j in range(4):
                k(f"v_pk_fma_f32 {p2(O+8*tk+2*j)}, {p2(UK+8*(tk+3-d)+2*j)}, {p2(WW+8*d+2*j)}, {p2(O+8*tk+2*j)}")
    for tk in range(4):
        vm.wait([("v", tk)])
        for j in range(4): unpack(k, UV + 8 * tk + 2 * j, VR + 4 * tk + j)
        for j in range(4): k(f"v_pk_mul_f32 {p2(O+8*tk+2*j)}, {p2(O+8*tk+2*j)}, {p2(UV+8*tk+2*j)}")
    D.stamp()
    for e in range(8):
        k(f"v_cvt_pk_bf16_f32 v{KR+2*e}, v{O+e}, v{O+8+e}"); k(f"v_cvt_pk_bf16_f32 v{KR+2*e+1}, v{O+16+e}, v{O+24+e}")
        k(f"ds_write_b64 v13, {p2(KR+2*e)} offset:{256*e}"); lg.issue("w")
    lg.wait_all(); k("s_barrier")
    for i in range(4):
        k(f"ds_read_b128 {p4(VR+4*i)}, v{18 if i < 2 else 19} offset:{1024*i}"); lg.issue(("r", i))
    for i in range(4):
        lg.wait([("r", i)]); k(f"s_mov_b32 s26, {4*i*4096}")
        k(f"buffer_store_dwordx4 {p4(VR+4*i)}, v14, s[60:63], s26 offen{ST}"); vm.issue("st")
    D.stamp(); D.flush(42)
    k(f"s_branch {end_label}")
    return 49152

def side2(k, dbg, end_label, csat=14):
    vm = Track(k, "vmcnt", 63); lg = Track(k, "lgkmcnt", 15); D = Dbg(k, dbg, 2)
    XP = 256; HP = 32; XO = 0; HO = XP + 4096; WB = HO + HP + 4096; OO = XO + XP; WL = 8 * WB
    k(f"s_load_dwordx4 s[28:31], s[0:1], {ARG['ssmk']}")
    k(f"s_load_dwordx2 s[32:33], s[0:1], {ARG['w3']}")
    k(f"s_load_dwordx2 s[42:43], s[0:1], {ARG['ws']}")
    D.stamp()
    wave_lane(k, 20, VL, 2)
    k("s_lshl_b32 s21, s2, 3"); k("s_add_u32 s21, s21, s100")
    k("s_lshl_b32 s24, s21, 12"); k(f"v_lshl_add_u32 v1, v{VL}, 4, s24")
    k(f"s_mul_i32 s26, s100, {WB}")
    k("s_lshl_b32 s24, s21, 1"); k("v_mov_b32 v4, s24"); k("v_mov_b32 v6, 0"); k("v_mov_b32 v5, 0")
    k("s_waitcnt lgkmcnt(0)")
    srd(k, 4, 42, WS_KV, 4 * MB); srd(k, 8, 28, 0, 4 * MB); srd(k, 12, 30, 0, 2048)
    if OPT.get("hwarm", 1):
        srd(k, 64, 42, WS_H, 4 * MB)
        k("s_and_b32 s24, s2, 6"); k("s_lshl_b32 s24, s24, 19"); k("s_lshr_b32 s25, s2, 3"); k("s_lshl_b32 s25, s25, 16"); k("s_add_u32 s24, s24, s25")
        k("s_lshl_b32 s25, s100, 12"); k("s_add_u32 s24, s24, s25")
        k(f"v_lshrrev_b32 v8, 5, v{VL}"); k("v_lshlrev_b32 v8, 15, v8"); k(f"v_and_b32 v9, 31, v{VL}"); k("v_lshl_add_u32 v8, v9, 7, v8")
        k("buffer_load_dword v22, v8, s[64:67], s24 offen"); vm.issue("t")
    for i in range(4):
        k(f"s_add_u32 m0, s26, {XO+XP}"); k("s_nop 0")
        k(f"buffer_load_dwordx4 v1, s[4:7], 0 offen offset:{1024*i} lds"); vm.issue(("x", i))
        k(f"s_add_u32 m0, s26, {HO+HP}"); k("s_nop 0")
        k(f"buffer_load_dwordx4 v1, s[8:11], 0 offen offset:{1024*i} lds"); vm.issue(("h", i))
        if i == 0: k("buffer_load_short_d16_hi v6, v4, s[12:15], 0 offen"); vm.issue("D")
    srd(k, 16, 32, 0, 1024 * 7168); srd(k, 52, 42, WS_AUX + AUX_CS3, 8 * 3584 * 4)
    k(f"v_lshl_add_u32 v8, v{VL}, 2, s26"); k("ds_write_b32 v8, v5"); lg.issue("z")
    k(f"v_and_b32 v8, 7, v{VL}"); k("v_lshl_add_u32 v8, v8, 2, s26"); k(f"ds_write_b32 v8, v5 offset:{HO}"); lg.issue("z")
    k("s_lshl_b32 s24, s3, 7"); k("s_add_u32 s24, s24, s2"); k("s_mul_i32 s25, s24, 2341"); k("s_lshr_b32 s58, s25, 16")
    k("s_mul_i32 s25, s58, 28"); k("s_sub_u32 s59, s24, s25")
    k("s_lshl_b32 s24, s58, 7"); k("s_lshl_b32 s25, s20, 5"); k("s_add_u32 s24, s24, s25"); k("s_lshl_b32 s25, s59, 8")
    k(f"v_lshrrev_b32 v8, 4, v{VL}"); k("v_add_u32 v8, s24, v8"); k("v_mul_u32_u24 v8, 7168, v8")
    k(f"v_and_b32 v9, 15, v{VL}"); k("v_lshl_add_u32 v8, v9, 4, v8"); k("v_add_u32 v20, s25, v8")
    k("s_lshl_b32 s27, s100, 13"); k(f"s_add_u32 s27, s27, {WL}"); k(f"v_lshl_add_u32 v21, v{VL}, 4, s27")
    k(f"v_lshrrev_b32 v12, 4, v{VL}"); k("v_lshlrev_b32 v12, 3, v12")
    k(f"v_bfe_u32 v13, v{VL}, 2, 2"); k("v_add_u32 v12, v12, v13"); k("v_lshlrev_b32 v12, 3, v12")
    k(f"v_and_b32 v13, 3, v{VL}")
    k("v_lshlrev_b32 v14, 5, v13"); k("v_sub_u32 v14, v14, v12"); k(f"s_add_u32 s24, s26, {XO+XP+24-32}"); k("v_add_u32 v14, s24, v14")
    k("v_lshl_add_u32 v15, v13, 3, v12"); k(f"s_add_u32 s24, s26, {HO+HP-24}"); k("v_add_u32 v15, s24, v15")
    k(f"v_lshl_add_u32 v16, v{VL}, 1, s26"); k(f"v_lshl_add_u32 v19, v{VL}, 4, s26")
    k(f"v_cmp_lt_u32 s[44:45], 62, v{VL}"); k(f"v_cmp_lt_u32 s[46:47], 61, v{VL}"); k(f"v_cmp_lt_u32 s[48:49], 60, v{VL}")
    AFR = 64; BFR = 192; AC = 32; XV = [17, 18]; TM = [8, 9, 10, 11, 12, 13]
    for r in XV: k(f"v_mov_b32 v{r}, 0")
    for i in range(4): k(f"v_mov_b32 v{AC+12+i}, 0")
    def rd_A(d):
        vm.wait([("x", (64 * d + 63) // 512)])
        for u in range(2):
            k(f"ds_read_b64_tr_b16 {p2(AFR+4*d+2*u)}, v14 offset:{128*d + 32*(1-u)}"); lg.issue(("A", d))
    def rd_B(s):
        vm.wait([("h", (128 * s + 127) // 512)])
        for u in range(2):
            k(f"ds_read_b64_tr_b16 {p2(BFR+4*s+2*u)}, v15 offset:{256*s + 32*u}"); lg.issue(("B", s))
    vm.wait(["D"]); D.stamp()
    rd_B(0); rd_A(0); rd_A(1); rd_B(1); rd_A(2)
    def rdx(T): k(f"ds_read_u16_d16_hi v{XV[T%2]}, v16 offset:{XO+XP+128*T}"); lg.issue(("xv", T))
    def epi(T):
        c = AC + 4 * (T % 4); p = AC + 4 * ((T - 1) % 4); t = TM[3 * (T % 2):]; xv = XV[T % 2]
        L = []
        L.append(lambda: k(f"v_cndmask_b32 v{t[2]}, v{c+3}, v{p+3}, s[48:49]"))
        L.append(lambda: k(f"v_cndmask_b32 v{t[1]}, v{c+2}, v{p+2}, s[46:47]"))
        L.append(lambda: k(f"v_cndmask_b32 v{t[0]}, v{c+1}, v{p+1}, s[44:45]"))
        L.append(lambda: k(f"v_add_f32_dpp v{t[1]}, v{t[2]}, v{t[1]} wave_ror:1 row_mask:0xf bank_mask:0xf"))
        def fx():
            lg.wait([("xv", T)]); k(f"v_fma_f32 v{t[2]}, v{xv}, v6, v{c}")
            if T + 2 < 32: rdx(T + 2)
            else: k("s_nop 0")
        L.append(fx)
        L.append(lambda: k(f"v_add_f32_dpp v{t[0]}, v{t[1]}, v{t[0]} wave_ror:1 row_mask:0xf bank_mask:0xf"))
        L.append(lambda: k("s_nop 1"))
        L.append(lambda: k(f"v_add_f32_dpp v{t[2]}, v{t[0]}, v{t[2]} wave_ror:1 row_mask:0xf bank_mask:0xf"))
        L.append(lambda: k(f"v_cvt_pk_bf16_f32 v{t[2]}, v{t[2]}, v{t[2]}"))
        def wr(): k(f"ds_write_b16 v16, v{t[2]} offset:{OO+128*T}"); lg.issue("o")
        L.append(wr)
        return L
    rdx(0); rdx(1)
    for T in range(34):
        pend = epi(T - 2) if T >= 2 else []
        if csat <= T < csat + 8:
            i = T - csat
            k(f"s_add_u32 m0, s27, {1024*i}"); k(f"s_mov_b32 s24, {i*4*7168}")
            k("buffer_load_dwordx4 v20, s[16:19], s24 offen lds"); vm.issue("c")
        if T < 32:
            if T + 3 < 32: rd_A(T + 3)
            if T % 2 == 0 and T // 2 + 2 < 16: rd_B(T // 2 + 2)
            c = AC + 4 * (T % 4)
            if T == 2: k("s_nop 7")
            ns = T // 2 + 1
            per = 2 if ns < 10 else 1
            for st in range(ns):
                lg.wait([("A", T - 2 * st), ("B", st)])
                k(f"v_mfma_f32_16x16x32_bf16 {p4(c)}, {p4(AFR+4*(T-2*st))}, {p4(BFR+4*st)}, {'0' if st == 0 else p4(c)}")
                for _ in range(per):
                    if pend: pend.pop(0)()
        while pend: pend.pop(0)()
    D.stamp()
    for i in range(4):
        k(f"ds_read_b128 {p4(48+4*i)}, v19 offset:{OO+1024*i}"); lg.issue(("ob", i))
    for i in range(4):
        lg.wait([("ob", i)])
        k(f"buffer_store_dwordx4 {p4(48+4*i)}, v1, s[4:7], 0 offen offset:{1024*i}{ST}"); vm.issue("st")
    vm.wait(["c"]); D.stamp()
    for i in range(8): k(f"ds_read_b128 {p4(64+4*i)}, v21 offset:{1024*i}"); lg.issue(("cr", i))
    k("s_mul_i32 s24, s58, 14336"); k("s_lshl_b32 s25, s59, 9"); k("s_add_u32 s24, s24, s25")
    colsum_reduce(k, vm, [64 + 4 * i for i in range(8)], [lambda i=i: lg.wait([("cr", i)]) for i in range(8)], WL + 65536, 160, 176, 52, "s24", True)
    D.flush(42)
    k(f"s_branch {end_label}")
    return WL + 65536 + 16384

def gemm128(k, which, dbg, end_label, NSLOT=None, RA=5, DEFER=3, rot=None, xbf=False, PRE=2, RAMP=2, APRE=3):
    if rot is None: rot = which == 1
    G1, G2, G4 = which == 1, which == 2, which == 4
    NSLOT = NSLOT or (5 if G1 else 6)
    NST = 28 if G4 else 16; STG = 16384; AL = NSLOT * STG
    if not G4: DEFER = 0
    vm = Track(k, "vmcnt", 63); lg = Track(k, "lgkmcnt", 15); D = Dbg(k, dbg, which)
    LD = Loader(k, "ld"); kl = LD.k
    nm = k.name
    ACC = 32; WF = 96; AR = 128; EP = AR + (32 if G1 else 16 * RA)
    VA = [4, 5]; VR = 8; VR2 = 16; VX = [6, 7]; VS = 24; VAR = 26
    k(f"s_load_dwordx4 s[28:31], s[0:1], {ARG[f'w{which}']}")
    k(f"s_load_dwordx4 s[40:43], s[0:1], {ARG['dbg']}")
    k(f"s_load_dwordx2 s[32:33], s[0:1], {ARG['q']}")
    D.stamp()
    if G4:
        tile_map(k, "4x8", 21, 22, 24, 25)
        k("s_lshr_b32 s58, s22, 3"); k("s_and_b32 s22, s22, 7")
        k("s_lshl_b32 s59, s22, 1"); k("s_add_u32 s59, s59, s58")
    else:
        half_map(k, 21, 22, 24, 25)
    wave_lane(k, 20, VL, 2)
    k("s_lshl_b32 s23, s21, 3"); k("s_lshl_b32 s24, s20, 1"); k("s_add_u32 s23, s23, s24")
    if G1:
        k("s_lshr_b32 s24, s22, 2"); k("s_add_u32 s24, s24, 1")
        k("s_sub_u32 s25, 0, s24"); k("s_bitcmp1_b32 s22, 1"); k("s_cselect_b32 s34, s24, s25")
        k("s_lshl_b32 s24, s23, 4"); k("s_add_u32 s35, s24, s34")
        k(f"s_mul_i32 s26, s20, {NSLOT*4096}"); k(f"s_add_u32 s26, s26, {AL}")
    else:
        k("s_lshl_b32 s26, s20, 13"); k(f"s_add_u32 s26, s26, {AL}")
    ash = 7 if G1 else 11
    if rot:
        k("s_add_u32 s24, s21, s22"); k("s_and_b32 s24, s24, 3"); k("s_lshl_b32 s47, s24, 19"); k(f"s_lshl_b32 s46, s24, {ash+2}")
    else:
        k("s_mov_b32 s46, 0"); k("s_mov_b32 s47, 0")
    k("s_cmp_eq_u32 s3, 1"); k(f"s_cbranch_scc1 {LD.lab}")
    VW = [4, 5, 6, 7]; LA = [8, 9, 10, 11]
    kl(f"v_lshrrev_b32 v28, 4, v{VL}"); kl(f"v_and_b32 v29, 15, v{VL}")
    kl("v_lshlrev_b32 v30, 1, v28"); kl("v_xor_b32 v29, v29, v30")
    kl("s_lshl_b32 s24, s20, 4")
    if G4: kl("s_mul_i32 s25, s58, 1792"); kl("s_add_u32 s24, s24, s25")
    kl("v_add_u32 v28, s24, v28"); kl("v_lshlrev_b32 v28, 11, v28")
    kl("s_lshl_b32 s24, s22, 8"); kl("v_add_u32 v28, s24, v28")
    kl("v_lshl_add_u32 v30, v29, 4, v28"); kl("v_xor_b32 v29, 8, v29"); kl("v_lshl_add_u32 v31, v29, 4, v28")
    for i in range(4):
        hi = (i >> 1) if G1 else (i & 1)
        kl(f"v_add_u32 v{VW[i]}, {i*(4*2048-1024)}, v{31 if hi else 30}")
    if G1:
        kl(f"v_lshrrev_b32 v28, 3, v{VL}"); kl(f"v_and_b32 v29, 7, v{VL}"); kl(f"v_lshrrev_b32 v30, 4, v{VL}"); kl("v_xor_b32 v29, v29, v30")
        kl("v_add_u32 v28, s35, v28"); kl("v_lshlrev_b32 v28, 11, v28")
        kl("v_lshl_add_u32 v30, v29, 4, v28"); kl("v_xor_b32 v29, 4, v29"); kl("v_lshl_add_u32 v31, v29, 4, v28")
        for i in range(4): kl(f"v_add_u32 v{LA[i]}, {i*(8*2048-1024)}, v{31 if i & 1 else 30}")
    kl("s_lshl_b32 s27, s20, 12")
    kl("s_waitcnt lgkmcnt(0)")
    srd(kl, 8, 28, 0, 3584 * 2048 if G4 else 2 * MB); srd(kl, 4, 32, 0, 4 * MB)
    def dma(s):
        kl(f"s_add_u32 m0, s27, {(s % NSLOT)*STG}"); kl("s_nop 0")
        for i in range(4):
            kl(f"buffer_load_dwordx4 v{VW[i]}, s[8:11], s47 offen offset:{1024*i} lds"); LD.vm.issue(("W", s))
        kl(f"s_add_u32 s47, s47, {64*2048}")
        if rot: kl(f"s_and_b32 s47, s47, {2*MB-1}")
        if G1:
            kl(f"s_add_u32 m0, s26, {(s % NSLOT)*4096}"); kl("s_nop 0")
            for i in range(4):
                kl(f"buffer_load_dwordx4 v{LA[i]}, s[4:7], s46 offen offset:{1024*i} lds"); LD.vm.issue(("W", s))
            kl("s_add_u32 s46, s46, 128")
            if rot: kl("s_and_b32 s46, s46, 2047")
    if G1: code_warm(kl, LD.vm, VL, "k1_kernel", "code_end", 72, 20, 32, fwd=False)
    for s in range(PRE): dma(s)
    if G1:
        srd(kl, 16, 42, WS_AUX, AUX_SIZE); srd(kl, 36, 40, 0, 256)
        kl("v_mov_b32 v1, 0"); kl("v_and_b32 v12, 127, v0"); kl("v_lshlrev_b32 v12, 2, v12"); kl("s_lshl_b32 s24, s22, 9"); kl("v_add_u32 v13, s24, v12")
    else:
        kl("s_lshl_b32 s35, s22, 1") if G2 else kl("s_mov_b32 s35, s59")
        qtile_addr(kl, VL, 23, 35, 8, 9, 28)
        if G4:
            srd(kl, 36, 42, WS_Y, 4 * MB)
            kl(f"v_lshrrev_b32 v28, 2, v{VL}"); kl("s_lshl_b32 s24, s59, 6"); kl("v_add_u32 v28, s24, v28"); kl("v_lshlrev_b32 v28, 12, v28")
            kl(f"v_bfe_u32 v29, v{VL}, 4, 1"); kl("v_lshlrev_b32 v29, 1, v29"); kl(f"v_and_b32 v30, 3, v{VL}"); kl("v_xor_b32 v29, v29, v30")
            kl("v_lshl_add_u32 v28, v29, 4, v28"); kl("s_lshl_b32 s24, s23, 5"); kl("v_add_u32 v10, s24, v28")
    nxt = [PRE]
    CSL = 2 * AL if G1 else 0
    if G1 and NSLOT == 5: CSL = (11 % NSLOT) * STG
    def loader_open(s):
        tags = [("W", s)] + (["X"] if s == NST - 1 and not G1 else [])
        LD.vm.wait(tags)
        if G1 and s == NST - 1: LD.lg.wait_all()
        kl("s_barrier")
        for _ in range(RAMP):
            if nxt[0] < NST and nxt[0] < max(s - 1, 0) + NSLOT: dma(nxt[0]); nxt[0] += 1
        if s == NST - 7: code_warm(kl, LD.vm, VL, f"{nm}_epi", f"{nm}_ld", 72, 20, 8, fwd=False, mask=31 if G4 else 15)
        if G1 and s == NST - 5: kl("buffer_load_dword v2, v1, s[36:39], 0 offen sc1"); LD.vm.issue("F")
        if G1 and s == NST - 3:
            spin_wait(kl, LD.vm, "F", 2, 1, 36, "0", 128)
            for i in range(16):
                kl(f"s_mov_b32 s44, {AUX_CS1 + 4096*i}"); kl(f"buffer_load_dword v{32+i}, v13, s[16:19], s44 offen sc1"); LD.vm.issue("C")
        if G1 and s == NST - 2:
            LD.vm.wait(["C"])
            for i in range(1, 16): kl(f"v_add_f32 v32, v32, v{32+i}")
            kl(f"v_add_u32 v12, {CSL}, v12"); kl("ds_write_b32 v12, v32"); LD.lg.issue("cw")
        if not G1 and s == NST - NSLOT + 1:
            for i in range(8 if G2 else 4):
                kl(f"s_add_u32 m0, s26, {i*1024}"); kl(f"s_mov_b32 s44, {(i%4)*8*2048 + (i//4)*128}")
                kl(f"buffer_load_dwordx4 v{8+i%2}, s[4:7], s44 offen lds"); LD.vm.issue("X")
            if G4:
                for i in range(4):
                    kl(f"s_add_u32 m0, s26, {4096+i*1024}"); kl(f"s_mov_b32 s44, {i*16*4096}")
                    kl("buffer_load_dwordx4 v10, s[36:39], s44 offen lds"); LD.vm.issue("X")
        if s == NST - 1 and not G4:
            code_warm(kl, LD.vm, VL, f"k{which+1}_kernel", f"k{which+2}_kernel", 72, 20, 16, mask=15)
    GQ = []
    if not G1:
        aks = 112 if G4 else 32
        k(f"s_mul_i32 s24, s23, {aks*1024}")
        if G4: k(f"s_mul_i32 s25, s58, {56*1024}"); k("s_add_u32 s24, s24, s25")
        k(f"v_lshl_add_u32 v{VA[0]}, v{VL}, 4, s24"); k(f"v_add_u32 v{VA[1]}, {aks*1024}, v{VA[0]}")
    k("s_waitcnt lgkmcnt(0)")
    def load_a(s, h):
        for mt in range(2):
            k(f"buffer_load_dwordx4 {p4(AR+(s%RA)*16+8*h+4*mt)}, v{VA[mt]}, s[4:7], s46 offen offset:{1024*h}"); vm.issue(("A", s, h))
        if h == 1:
            k("s_add_u32 s46, s46, 2048")
            if rot: k("s_and_b32 s46, s46, 32767")
    if not G1:
        srd(k, 4, 42, WS_G3 if G4 else WS_H, 14 * MB if G4 else 4 * MB)
        for s in range(RA):
            tgt = (lambda f: f()) if s < APRE else GQ.append
            tgt(lambda s=s: load_a(s, 0)); tgt(lambda s=s: load_a(s, 1))
    srd(k, 12, 42, WS_H if G1 else WS_X1, 4 * MB); srd(k, 16, 42, WS_AUX, AUX_SIZE)
    if G1:
        k(f"v_lshrrev_b32 v28, 4, v{VL}"); k("v_lshlrev_b32 v28, 3, v28"); k(f"v_bfe_u32 v29, v{VL}, 2, 2"); k("v_add_u32 v29, v28, v29")
    else:
        k(f"v_lshrrev_b32 v29, 2, v{VL}")
    k("v_lshlrev_b32 v29, 8, v29"); k(f"v_and_b32 v30, 3, v{VL}"); k("v_lshl_add_u32 v29, v30, 3, v29")
    k(f"v_bfe_u32 v28, v{VL}, 2, 3")
    if G4: k("s_lshl_b32 s24, s58, 2"); k("v_xor_b32 v28, s24, v28")
    for t in range(8):
        k(f"v_xor_b32 v30, {t}, v28"); k(f"v_lshl_add_u32 v{VR+t}, v30, 5, v29"); k(f"v_add_u32 v{VR2+t}, 65536, v{VR+t}")
    k("s_lshl_b32 s24, s23, 15"); k("s_lshl_b32 s25, s59, 11") if G4 else k("s_lshl_b32 s25, s22, 12"); k("s_add_u32 s24, s24, s25")
    k(f"v_lshl_add_u32 v{VX[0]}, v{VL}, 4, s24"); k(f"v_add_u32 v{VX[1]}, 32768, v{VX[0]}")
    k("v_mov_b32 v1, 0")
    if G1:
        srd(k, 36, 40, 0, 256); srd(k, 48, 42, WS_AUX + AUX_ST1, 16384)
        k(f"v_and_b32 v28, 15, v{VL}"); k("v_lshlrev_b32 v29, 7, v28"); k("v_add_u32 v29, s26, v29")
        k(f"v_add_u32 v{VS}, s35, v28"); k(f"v_add_u32 v{VS+1}, 16, v{VS}"); k(f"v_lshlrev_b32 v{VS}, 3, v{VS}"); k(f"v_lshlrev_b32 v{VS+1}, 3, v{VS+1}")
        k("v_lshrrev_b32 v28, 1, v28"); k(f"v_lshrrev_b32 v30, 4, v{VL}"); k("v_xor_b32 v28, v28, v30")
        k(f"v_lshl_add_u32 v{VAR}, v28, 4, v29"); k("v_xor_b32 v28, 4, v28"); k(f"v_lshl_add_u32 v{VAR+1}, v28, 4, v29")
    else:
        k(f"v_and_b32 v28, 15, v{VL}"); k("s_lshl_b32 s24, s23, 7"); k(f"v_lshl_add_u32 v{VS}, v28, 3, s24")
    if G4: srd(k, 48, 30, 0, 4 * MB); srd(k, 52, 42, WS_XCH, 8 * MB)
    STR = EP; XR = EP + 4
    def load_st():
        if G1:
            for mt in range(2):
                k(f"buffer_load_dwordx2 {p2(STR+2*mt)}, v{VS+mt}, s[48:51], 0 offen sc1"); vm.issue("S")
            return
        k(f"s_mov_b32 s44, {AUX_ST1}")
        for mt in range(2):
            k(f"buffer_load_dwordx2 {p2(STR+2*mt)}, v{VS}, s[16:19], s44 offen offset:{128*mt}"); vm.issue("S")
        if G4:
            for mt in range(2):
                for p in range(2):
                    k(f"buffer_load_dwordx4 {p4(XR+8*mt+4*p)}, v{VX[mt]}, s[12:15], 0 offen offset:{1024*p}"); vm.issue("S")
    G = [(s, ks, t) for s in range(NST - DEFER) for ks in range(2) for t in range(8)]
    for half in (1, 0):
        for s in range(NST - DEFER, NST):
            for ks in range(2): G += [(s, ks, 4 * half + t) for t in range(4)]
    n_send = len(G) - DEFER * 8
    last_use = {}
    for n, (s, ks, t) in enumerate(G): last_use[(s, ks)] = n
    opened = set(); seen = set()
    def rd(n):
        s, ks, t = G[n]
        if s not in opened:
            opened.add(s)
            k("s_barrier"); loader_open(s)
            if dbg == 2:
                kl("s_memtime s[80:81]"); kl("s_waitcnt lgkmcnt(0)"); kl(f"v_writelane_b32 v60, s80, {s}")
                if s == NST - 1:
                    srd(kl, 96, 42, WS_AUX + 2 * MB + (which % 4) * 262144, 262144)
                    kl("v_and_b32 v61, 255, v0"); kl("v_lshlrev_b32 v61, 2, v61"); kl("s_lshl_b32 s63, s2, 10"); kl("v_add_u32 v61, s63, v61")
                    kl("buffer_store_dword v60, v61, s[96:99], 0 offen")
            if G1:
                for kk in range(2):
                    for mt in range(2):
                        k(f"ds_read_b128 {p4(AR+(s%2)*16+8*kk+4*mt)}, v{VAR+kk} offset:{(s % NSLOT)*4096 + 2048*mt}"); lg.issue(("ra", s))
            if s == (NST - 2 if G1 else NST - 4): GQ.append(load_st)
        sl = s % NSLOT
        for u in range(2):
            ro = (32 * ks + (4 if G1 else 16) * u) * 256
            k(f"ds_read_b64_tr_b16 {p2(WF+4*(n%8)+2*u)}, v{(VR if sl < 4 else VR2)+t} offset:{(sl % 4)*STG + ro}"); lg.issue(("R", n))
    for n in range(7):
        rd(n)
        if n == 0: D.stamp()
    def send():
        k("s_lshl_b32 s24, s2, 2"); k("s_add_u32 s24, s24, s20")
        k("s_lshl_b32 s25, s24, 13"); k(f"v_lshl_add_u32 v28, v{VL}, 4, s25")
        k("s_xor_b32 s25, s25, 32768"); k(f"v_lshl_add_u32 v29, v{VL}, 4, s25")
        k("s_lshl_b32 s60, s24, 7"); k(f"s_add_u32 s60, s60, {AUX_FLG + 32*128}")
        k("s_xor_b32 s24, s24, 4"); k("s_lshl_b32 s61, s24, 7"); k(f"s_add_u32 s61, s61, {AUX_FLG + 32*128}")
        k("s_movk_i32 s44, 4096")
        for c in range(8):
            k(f"buffer_store_dwordx4 {p4(ACC+32+4*c)}, v28, s[52:55], {'0' if c < 4 else 's44'} offen offset:{1024*(c%4)} sc1"); vm.issue("P")
    for n, (s, ks, t) in enumerate(G):
        if G4 and n == n_send + 2:
            assert not GQ
            send()
        lg.wait([("R", n)])
        if not G1: vm.wait([("A", s, ks)])
        for mt in range(2):
            c = ACC + 8 * t + 4 * mt
            b = AR + (s % (2 if G1 else RA)) * 16 + 8 * ks + 4 * mt
            k(f"v_mfma_f32_16x16x32_bf16 {p4(c)}, {p4(WF+4*(n%8))}, {p4(b)}, {p4(c) if (t, mt) in seen else '0'}"); seen.add((t, mt))
            if mt == 0 and n + 7 < len(G): rd(n + 7)
        if GQ and n % 2: GQ.pop(0)()
        if not G1 and last_use[(s, ks)] == n and s + RA < NST: GQ.append(lambda s=s, ks=ks: load_a(s + RA, ks))
    assert not GQ
    k.label(f"{nm}_epi")
    D.stamp()
    it = [(mt, h) for mt in range(2) for h in range(2)]
    if G1:
        k(f"v_lshrrev_b32 v4, 4, v{VL}"); k("v_lshlrev_b32 v4, 4, v4"); k(f"v_add_u32 v4, {CSL}, v4")
        CS = EP + 16; P = EP + 8; T = EP + 48; PK = EP + 64
        for t in range(8):
            k(f"ds_read_b128 {p4(CS+4*t)}, v4 offset:{64*t}"); lg.issue(("cs", t // 2))
        vm.wait(["S"])
        for mt in range(2):
            r1 = STR + 2 * mt + 1
            k(f"v_mul_f32 v28, v{r1}, v{r1}"); k(f"v_mul_f32 v28, {hx32(-1e-5)}, v28"); k(f"v_add_f32 v28, {hx32(1.0+1e-5)}, v28")
            k("v_rsq_f32 v28, v28"); k("s_nop 0"); k(f"v_mul_f32 v28, v28, v{r1}")
            gelu_consts(k, 28, STR + 2 * mt, P + 4 * mt, P + 4 * mt + 2, 29)
        for p in range(4):
            lg.wait([("cs", p)])
            items = [(ACC + 8 * (2 * p + j) + 4 * mt + 2 * h, CS + 4 * (2 * p + j) + 2 * h, P + 4 * mt, P + 4 * mt + 2)
                     for mt in range(2) for j in range(2) for h in range(2)]
            gelu_block(k, items, T)
            pk = PK + 8 * (p % 2)
            for i, x in enumerate(items): k(f"v_cvt_pk_bf16_f32 v{pk+i}, v{x[0]}, v{x[0]+1}")
            for mt in range(2): k(f"buffer_store_dwordx4 {p4(pk+4*mt)}, v{VX[mt]}, s[12:15], 0 offen offset:{1024*p}{ST}")
        D.stamp()
    elif G2:
        QR = WF; U = AR; PK = AR + 16; SS = 26; VQR = 8
        qtile_rd_addr(k, VL, 26, VQR, 28)
        for t in range(8):
            for mt in range(2):
                k(f"ds_read_b64 {p2(QR+4*t+2*mt)}, v{VQR+t%4} offset:{4096*(t//4)+2048*mt}"); lg.issue(("q", t))
        vm.wait(["S"])
        for mt in range(2):
            r = STR + 2 * mt
            k(f"v_mul_f32 v{r}, v{r}, v{r+1}"); k(f"v_sub_f32 v{r}, 0, v{r}")
        k("v_mov_b32 v16, 0x3f803f80")
        for i in range(4): k(f"v_mov_b32 v{SS+i}, 0")
        for t in range(8):
            lg.wait([("q", t)])
            uu = U + 8 * (t % 2)
            for mt, h in it: unpack(k, uu + 4 * mt + 2 * h, QR + 4 * t + 2 * mt + h)
            for mt, h in it:
                u = uu + 4 * mt + 2 * h; st = STR + 2 * mt
                k(f"v_pk_fma_f32 {p2(u)}, {p2(u)}, {p2(st)}, {p2(st)} op_sel:[0,1,0] op_sel_hi:[1,1,0]")
            for mt, h in it:
                c = ACC + 8 * t + 4 * mt + 2 * h
                k(f"v_pk_add_f32 {p2(c)}, {p2(c)}, {p2(uu+4*mt+2*h)}")
            for mt, h in it:
                c = ACC + 8 * t + 4 * mt + 2 * h
                k(f"v_cvt_pk_bf16_f32 v{PK+16*mt+4*(t//2)+2*(t%2)+h}, v{c}, v{c+1}")
            if t % 2 == 1:
                for mt in range(2):
                    k(f"buffer_store_dwordx4 {p4(PK+16*mt+4*(t//2))}, v{VX[mt]}, s[12:15], 0 offen offset:{1024*(t//2)}{ST}")
        for i in range(16):
            for mt in range(2):
                k(f"v_dot2_f32_bf16 v{SS+2*mt}, v{PK+16*mt+i}, v16, v{SS+2*mt}")
                k(f"v_dot2_f32_bf16 v{SS+2*mt+1}, v{PK+16*mt+i}, v{PK+16*mt+i}, v{SS+2*mt+1}")
        k("s_nop 3")
        k(f"v_permlane16_swap_b32 v{SS}, v{SS+1}"); k(f"v_permlane16_swap_b32 v{SS+2}, v{SS+3}"); k("s_nop 1")
        k(f"v_add_f32 v{SS}, v{SS}, v{SS+1}"); k(f"v_add_f32 v{SS+2}, v{SS+2}, v{SS+3}"); k("s_nop 1")
        k(f"v_permlane32_swap_b32 v{SS}, v{SS+2}"); k("s_nop 1")
        k(f"v_add_f32 v{SS}, v{SS}, v{SS+2}")
        k(f"v_lshrrev_b32 v16, 5, v{VL}"); k("v_lshlrev_b32 v16, 10, v16")
        k(f"v_and_b32 v17, 31, v{VL}"); k("v_lshl_add_u32 v16, v17, 4, v16")
        k("s_lshl_b32 s44, s23, 10"); k("s_lshr_b32 s45, s22, 2"); k("s_lshl_b32 s45, s45, 9"); k("s_add_u32 s44, s44, s45")
        k("s_and_b32 s45, s22, 3"); k("s_lshl_b32 s45, s45, 2"); k("s_add_u32 s44, s44, s45")
        k(f"buffer_store_dword v{SS}, v16, s[16:19], s44 offen{ST}")
        D.stamp()
    else:
        vm.wait_all()
        k(f"v_lshlrev_b32 v30, 22, v{VL}"); k("v_mov_b32 v31, 1")
        k("buffer_store_dword v31, v30, s[16:19], s60 offen sc1"); vm.issue("fl")
        k("buffer_load_dword v2, v1, s[16:19], s61 offen sc1"); vm.issue("F2")
        QR = WF; YR = WF + 16; UQ = AR; UU = AR + 32; TY = AR + 64; PR = ACC + 32; VQR = 8; VQ = [12, 13]
        qtile_rd_addr(k, VL, 26, VQR, 16)
        for t in range(4):
            for mt in range(2):
                k(f"ds_read_b64 {p2(QR+4*t+2*mt)}, v{VQR+t} offset:{2048*mt}"); lg.issue(("q", t))
        k(f"v_lshrrev_b32 v5, 2, v{VL}"); k("v_lshlrev_b32 v5, 6, v5")
        k(f"v_and_b32 v16, 3, v{VL}"); k("v_lshl_add_u32 v5, v16, 3, v5"); k("v_add_u32 v5, s26, v5")
        k(f"v_bfe_u32 v16, v{VL}, 4, 1")
        k("v_lshl_add_u32 v14, v16, 5, v5"); k("v_xor_b32 v16, 1, v16"); k("v_lshl_add_u32 v15, v16, 5, v5")
        for t in range(4):
            for mt in range(2):
                k(f"ds_read_b64_tr_b16 {p2(YR+4*t+2*mt)}, v{14+mt} offset:{4096+1024*t}"); lg.issue(("y", t))
        k(f"v_lshl_add_u32 v4, v{VL}, 4, s26")
        qtile_addr(k, VL, 23, 59, VQ[0], VQ[1], 16)
        for mt in range(2):
            r = STR + 2 * mt
            k(f"v_mul_f32 v{r}, v{r}, v{r+1}"); k(f"v_sub_f32 v{r}, 0, v{r}")
        for t in range(4):
            o = lambda mt, h: 8 * t + 4 * mt + 2 * h
            for mt, h in it: unpack(k, UU + o(mt, h), XR + 8 * mt + 4 * (t // 2) + 2 * (t % 2) + h)
            for mt, h in it: k(f"v_pk_add_f32 {p2(ACC+o(mt,h))}, {p2(ACC+o(mt,h))}, {p2(UU+o(mt,h))}")
        for t in range(4):
            o = lambda mt, h: 8 * t + 4 * mt + 2 * h
            lg.wait([("q", t), ("y", t)])
            for mt, h in it: unpack(k, UQ + o(mt, h), QR + 4 * t + 2 * mt + h)
            for mt, h in it: unpack(k, TY + 4 * mt + 2 * h, YR + 4 * t + 2 * mt + h)
            for mt, h in it:
                st = STR + 2 * mt
                k(f"v_pk_fma_f32 {p2(UU+o(mt,h))}, {p2(UQ+o(mt,h))}, {p2(st)}, {p2(st)} op_sel:[0,1,0] op_sel_hi:[1,1,0]")
            for mt, h in it: k(f"v_pk_mul_f32 {p2(UU+o(mt,h))}, {p2(UU+o(mt,h))}, {p2(TY+4*mt+2*h)}")
        k(f"s_mov_b32 s62, {hx32(-LOG2E)}"); k(f"s_mov_b32 s63, {hx32(-LOG2E)}")
        spin_wait(k, vm, "F2", 2, 1, 16, "s61", 1)
        for c in range(8):
            k(f"buffer_load_dwordx4 {p4(PR+4*c)}, v29, s[52:55], {'0' if c < 4 else 's44'} offen offset:{1024*(c%4)} sc1"); vm.issue(("PR", c // 2))
        D.stamp()
        T = WF
        for t in range(4):
            o = lambda mt, h: 8 * t + 4 * mt + 2 * h
            vm.wait([("PR", t)])
            for mt, h in it: k(f"v_pk_add_f32 {p2(ACC+o(mt,h))}, {p2(ACC+o(mt,h))}, {p2(PR+o(mt,h))}")
            for mt, h in it: k(f"v_pk_mul_f32 {p2(PR+o(mt,h))}, {p2(ACC+o(mt,h))}, s[62:63]")
            for i in range(8): k(f"v_exp_f32 v{PR+8*t+i}, v{PR+8*t+i}")
            for mt, h in it: k(f"v_pk_mul_f32 {p2(ACC+o(mt,h))}, {p2(ACC+o(mt,h))}, {p2(UU+o(mt,h))}")
            for mt, h in it: k(f"v_pk_add_f32 {p2(PR+o(mt,h))}, {p2(PR+o(mt,h))}, 1.0 op_sel_hi:[1,0]")
            for i in range(8): k(f"v_rcp_f32 v{PR+8*t+i}, v{PR+8*t+i}")
            k("s_nop 0")
            for mt, h in it: k(f"v_pk_fma_f32 {p2(ACC+o(mt,h))}, {p2(ACC+o(mt,h))}, {p2(PR+o(mt,h))}, {p2(UQ+o(mt,h))}")
            for mt, h in it: k(f"v_cvt_pk_bf16_f32 v{T+4*t+2*mt+h}, v{ACC+o(mt,h)}, v{ACC+o(mt,h)+1}")
            for mt in range(2):
                k(f"ds_write_b64 v{VQR+t}, {p2(T+4*t+2*mt)} offset:{2048*mt}"); lg.issue("o")
        for i in range(4):
            k(f"ds_read_b128 {p4(T+16+4*i)}, v4 offset:{1024*i}"); lg.issue(("ob", i))
        for i in range(4):
            lg.wait([("ob", i)])
            k(f"s_mov_b32 s44, {i*8*2048}")
            k(f"buffer_store_dwordx4 {p4(T+16+4*i)}, v{VQ[i%2]}, s[48:51], s44 offen")
    D.flush(42)
    k("s_endpgm")
    LD.append_to(k)
    return (2 * AL + (1024 if NSLOT < 5 else 0)) if G1 else AL + 32768

def gemm3(k, dbg, end_label, mapmode="4x8", NSLOT=5, RA=4, touch_at=12, PRE=2, RAMP=2):
    NST = 16; ROWB = 7168; STG = 64 * 448; FT = 14
    vm = Track(k, "vmcnt", 63); lg = Track(k, "lgkmcnt", 15); D = Dbg(k, dbg, 3)
    LD = Loader(k, "ld"); kl = LD.k; nm = k.name
    ACC = 16; WF = 128; AR = 184; VA = [1, 14]
    CS_LDS = NSLOT * STG
    k(f"s_load_dwordx4 s[28:31], s[0:1], {ARG['w3']}")
    k(f"s_load_dwordx2 s[42:43], s[0:1], {ARG['ws']}")
    D.stamp()
    tile_map(k, mapmode, 21, 22, 24, 25)
    wave_lane(k, 20, VL, 2)
    k("s_lshl_b32 s23, s21, 3"); k("s_lshl_b32 s24, s20, 1"); k("s_add_u32 s23, s23, s24")
    k("s_cmp_eq_u32 s3, 1"); k(f"s_cbranch_scc1 {LD.lab}")
    VDMA = 16
    kl("s_mul_i32 s24, s20, 448"); kl("s_mul_i32 s25, s22, 448"); kl("s_movk_i32 s26, 2341")
    kl("s_mul_i32 s27, s20, 7168"); kl("s_mov_b32 s47, 0")
    kl("s_waitcnt lgkmcnt(0)")
    srd(kl, 8, 28, 0, 1024 * 7168)
    def dma1(s, i):
        if i % 4 == 0: kl(f"s_add_u32 m0, s27, {(s % NSLOT)*STG + (i//4)*4096}"); kl("s_nop 0")
        kl(f"buffer_load_dwordx4 v{VDMA+i}, s[8:11], s47 offen offset:{1024*(i%4)} lds"); LD.vm.issue(("W", s))
        if i == 6: kl(f"s_add_u32 s47, s47, {64*ROWB}")
    for i in range(7):
        kl(f"v_add_u32 v4, s24, v{VL}")
        if i: kl(f"v_add_u32 v4, {64*i}, v4")
        kl("v_mul_u32_u24 v5, s26, v4"); kl("v_lshrrev_b32 v5, 16, v5")
        kl("v_mul_u32_u24 v6, 28, v5"); kl("v_sub_u32 v6, v4, v6")
        kl("v_bfe_u32 v8, v5, 2, 1"); kl("v_lshlrev_b32 v8, 1, v8"); kl("v_xor_b32 v6, v6, v8")
        kl(f"v_mul_u32_u24 v5, {ROWB}, v5"); kl("v_lshl_add_u32 v5, v6, 4, v5")
        kl(f"v_add_u32 v{VDMA+i}, s25, v5")
        if i % 4: kl(f"v_subrev_u32 v{VDMA+i}, {1024*(i%4)}, v{VDMA+i}")
        dma1(0, i)
    def dma(s):
        for i in range(7): dma1(s, i)
    for s in range(1, PRE): dma(s)
    srd(kl, 16, 42, WS_AUX, AUX_SIZE); srd(kl, 36, 30, 0, 3584 * 2048)
    kl("v_and_b32 v9, 255, v0"); kl("v_lshlrev_b32 v9, 2, v9"); kl("s_mul_i32 s25, s22, 896"); kl("v_add_u32 v10, s25, v9"); kl(f"v_add_u32 v9, {CS_LDS}, v9")
    nxt = [PRE]
    def loader_open(s):
        LD.vm.wait([("W", s)])
        if s == NST - 1: LD.lg.wait_all()
        kl("s_barrier")
        for _ in range(RAMP):
            if nxt[0] < NST and nxt[0] < max(s - 1, 0) + NSLOT: dma(nxt[0]); nxt[0] += 1
        if s == 4:
            for i in range(8):
                kl(f"s_mov_b32 s26, {AUX_CS3 + i*14336}"); kl(f"buffer_load_dword v{32+i}, v10, s[16:19], s26 offen"); LD.vm.issue("C")
        if s == 8:
            LD.vm.wait(["C"])
            for i in range(1, 8): kl(f"v_add_f32 v32, v32, v{32+i}")
            kl("ds_write_b32 v9, v32"); LD.lg.issue("cs")
        if s == NST - 6: code_warm(kl, LD.vm, VL, f"{nm}_epi", f"{nm}_ld", 72, 12, 4, fwd=False)
        if s == touch_at:
            kl("s_lshl_b32 s26, s20, 8"); kl("s_add_u32 s26, s26, s2"); kl("s_lshl_b32 s26, s26, 13"); kl(f"v_lshl_add_u32 v4, v{VL}, 7, s26")
            kl("buffer_load_dword v5, v4, s[36:39], 0 offen"); LD.vm.issue("t")
        if s == NST - 1: code_warm(kl, LD.vm, VL, "k4_kernel", "code_end", 72, 12, 8)
    GQ = []
    k("s_lshl_b32 s24, s23, 15"); k(f"v_lshl_add_u32 v{VA[0]}, v{VL}, 4, s24"); k(f"v_add_u32 v{VA[1]}, 32768, v{VA[0]}")
    k("s_lshl_b32 s24, s23, 10"); k(f"v_lshl_add_u32 v4, v{VL}, 4, s24")
    k("s_mov_b32 s46, 0")
    k("s_waitcnt lgkmcnt(0)")
    srd(k, 4, 42, WS_X1, 4 * MB); srd(k, 16, 42, WS_AUX, AUX_SIZE)
    def load_a(s, ks, mt):
        k(f"buffer_load_dwordx4 {p4(AR+(s%RA)*16+8*ks+4*mt)}, v{VA[mt]}, s[4:7], s46 offen offset:{1024*ks}"); vm.issue(("A", s, ks))
        if ks == 1 and mt == 1: k("s_add_u32 s46, s46, 2048")
    STR = 248
    for s in range(RA):
        for ks in range(2):
            for mt in range(2):
                if s < 2: load_a(s, ks, mt)
                else: GQ.append(lambda s=s, ks=ks, mt=mt: load_a(s, ks, mt))
        if s == 0:
            for mt in range(2):
                k(f"buffer_load_dwordx4 {p4(STR+4*mt)}, v4, s[16:19], 0 offen offset:{AUX_ST2+1024*mt}"); vm.issue("ST")
    srd(k, 12, 42, WS_G3, 14 * MB)
    k(f"v_lshrrev_b32 v4, 2, v{VL}"); k("v_mul_u32_u24 v4, 448, v4")
    k(f"v_and_b32 v5, 3, v{VL}"); k("v_lshl_add_u32 v4, v5, 3, v4")
    k(f"v_bfe_u32 v5, v{VL}, 4, 1"); k("v_lshlrev_b32 v5, 5, v5")
    k("v_add_u32 v8, v4, v5"); k("v_sub_u32 v9, v4, v5")
    RB = {(0, 0): 8, (0, 1): 9}
    for b in (1, 2):
        for par in range(2):
            RB[(b, par)] = 8 + 2 * b + par; k(f"v_add_u32 v{8+2*b+par}, {b*2*STG}, v{8+par}")
    k(f"v_lshrrev_b32 v15, 4, v{VL}"); k("v_lshlrev_b32 v15, 4, v15"); k(f"v_add_u32 v15, {CS_LDS}, v15")
    k("s_mul_i32 s24, s23, 114688"); k("s_mul_i32 s25, s22, 7168"); k("s_add_u32 s24, s24, s25")
    k(f"v_lshl_add_u32 v6, v{VL}, 4, s24"); k("v_add_u32 v7, 114688, v6")
    def rd_w(s, ks, t, u):
        slot = s % NSLOT
        off = (slot % 2) * STG + (32 * ks + 16 * u) * 448 + 32 * t
        k(f"ds_read_b64_tr_b16 {p2(WF+4*t+2*u)}, v{RB[(slot//2, t%2)]} offset:{off}"); lg.issue(("R", s, ks, t))
    k("s_barrier"); loader_open(0)
    D.stamp()
    for t in range(FT):
        for u in range(2): rd_w(0, 0, t, u)
    for s in range(NST):
        for ks in range(2):
            last = (s == NST - 1 and ks == 1)
            ns, nk = (s, 1) if ks == 0 else (s + 1, 0)
            vm.wait([("A", s, ks)])
            for t in range(FT):
                if ks == 1 and t == 0 and s + 1 < NST:
                    k("s_barrier"); loader_open(s + 1)
                lg.wait([("R", s, ks, t)])
                for mt in range(2):
                    a = WF + 4 * t; b = AR + (s % RA) * 16 + 8 * ks + 4 * mt; c = ACC + 8 * t + 4 * mt
                    k(f"v_mfma_f32_16x16x32_bf16 {p4(c)}, {p4(a)}, {p4(b)}, {'0' if (s == 0 and ks == 0) else p4(c)}")
                    if t > 0 and not last: rd_w(ns, nk, t - 1, mt)
                if GQ and t % 3 == 1: GQ.pop(0)()
            if not last: rd_w(ns, nk, FT - 1, 0); rd_w(ns, nk, FT - 1, 1)
            if s + RA < NST:
                for mt in range(2): GQ.append(lambda s=s, ks=ks, mt=mt: load_a(s + RA, ks, mt))
    assert not GQ
    k.label(f"{nm}_epi")
    D.stamp()
    CS = WF; T = WF + 16; PK = AR; P = AR + 32
    def rd_cs(p):
        for h in range(2):
            k(f"ds_read_b128 {p4(CS+(p%2)*8+4*h)}, v15 offset:{128*p+64*h}"); lg.issue(("C", p))
    rd_cs(0)
    for mt in range(2):
        r = STR + 4 * mt
        for i in range(1, 4): k(f"v_add_f32 v{r}, v{r}, v{r+i}")
        k(f"v_mov_b32 v{r+1}, v{r}"); k("s_nop 1"); k(f"v_permlane32_swap_b32 v{r}, v{r+1}"); k("s_nop 1")
        k(f"v_add_f32 v{r}, v{r}, v{r+1}"); k(f"v_mov_b32 v{r+1}, v{r}"); k("s_nop 1")
        k(f"v_permlane16_swap_b32 v{r}, v{r+1}"); k("s_nop 1")
        k(f"v_mul_f32 v{r}, {hx32(1/1024)}, v{r}"); k(f"v_mul_f32 v{r+1}, {hx32(1/1024)}, v{r+1}")
        k(f"v_fma_f32 v{r+1}, -v{r}, v{r}, v{r+1}"); k(f"v_max_f32 v{r+1}, 0, v{r+1}"); k(f"v_add_f32 v{r+1}, {hx32(1e-5)}, v{r+1}")
        k(f"v_rsq_f32 v{r+1}, v{r+1}"); k("s_nop 0")
        gelu_consts(k, r + 1, r, P + 4 * mt, P + 4 * mt + 2, 4)
    for p in range(7):
        if p + 1 < 7: rd_cs(p + 1)
        lg.wait([("C", p)])
        items = [(ACC + 8 * (2 * p + j) + 4 * mt + 2 * h, CS + (p % 2) * 8 + 4 * j + 2 * h, P + 4 * mt, P + 4 * mt + 2)
                 for mt in range(2) for j in range(2) for h in range(2)]
        gelu_block(k, items, T)
        pk = PK + (p % 2) * 8
        for i, x in enumerate(items): k(f"v_cvt_pk_bf16_f32 v{pk+i}, v{x[0]}, v{x[0]+1}")
        k(f"s_mov_b32 s26, {1024*p}")
        for mt in range(2): k(f"buffer_store_dwordx4 {p4(pk+4*mt)}, v{6+mt}, s[12:15], s26 offen{ST}")
    D.stamp(); D.flush(42)
    k("s_endpgm")
    LD.append_to(k)
    return NSLOT * STG + 1024

def build(path, dbg=False, opts=None):
    o = dict(map3="4x8", k1=dict(RAMP=1, PRE=4), k2=dict(RAMP=1, PRE=3), k3=dict(RAMP=1, PRE=3), k4=dict(RAMP=1, PRE=4, APRE=2))
    for kk, vv in (opts or {}).items():
        if isinstance(vv, dict) and kk in o: o[kk] = {**o[kk], **vv}
        else: o[kk] = vv
    OPT.clear(); OPT.update(o)
    kerns = []; launches = []
    def kernel(name, main, side=None):
        k = Kern(name, vgpr=256)
        k("s_cmp_ge_u32 s2, 256"); k(f"s_cbranch_scc1 {name}_end0")
        if side:
            k("s_cmp_ge_u32 s2, 128"); k(f"s_cbranch_scc0 {name}_side")
        k(f"s_branch {name}_main")
        k.label(f"{name}_end0"); k("s_endpgm")
        lds = 0
        if side:
            k.label(f"{name}_side"); lds = side(k, f"{name}_end0")
        k.label(f"{name}_main"); lds = max(lds, main(k, None))
        kerns.append(k); launches.append((name, 256, 512, lds))
    kernel("k1_kernel", lambda k, e: gemm128(k, 1, dbg, e, **o.get("k1", {})), lambda k, e: side1(k, dbg, e))
    kernel("k2_kernel", lambda k, e: gemm128(k, 2, dbg, e, **o.get("k2", {})), lambda k, e: side2(k, dbg, e, **o.get("s2", {})))
    kernel("k3_kernel", lambda k, e: gemm3(k, dbg, e, o["map3"], **o.get("k3", {})))
    kernel("k4_kernel", lambda k, e: gemm128(k, 4, dbg, e, **o.get("k4", {})))
    kerns[-1].label("code_end")
    hdr = "".join(l for l in open("ref_hdr.s").readlines()[:15])
    emit_file(path, hdr, launches, kerns)
    return launches
STAMPS = [("k1side",1,0,128),("k1",1,128,256),("k2side",2,0,128),("k2",2,128,256),("k3",3,0,256),("k4",4,0,256)]
if __name__ == "__main__":
    print(build(sys.argv[1] if len(sys.argv) > 1 else "full.s", dbg=(len(sys.argv) > 2)))
```

```python
import sys
from asmlib import *

MB = 1 << 20
OPT = {}
WS_H   = 0 * MB
WS_X1  = 4 * MB
WS_G3  = 8 * MB
WS_KV  = 24 * MB
WS_Y   = WS_KV
WS_AUX = 32 * MB
WS_XCH = 36 * MB
AUX_ST2 = 0
AUX_ST1 = 256 * 1024
AUX_CS3 = 512 * 1024
AUX_CS1 = 640 * 1024
AUX_FLG = 768 * 1024
FLG_BYTES = 256 * 1024
AUX_DBG = 1 * MB
AUX_SIZE = 4 * MB
C0 = 2.0 * 0.7978845608028654 * 1.4426950408889634
C1 = C0 * 0.044715
LOG2E = 1.4426950408889634
ARG = dict(q=0, k=8, v=16, shk=24, ssmk=32, ssmD=40, w1=56, w2=64, w3=72, w4=80, out=88, dbg=96, ws=104)

class Track:
    def __init__(self, k, name, maxn):
        self.k = k; self.name = name; self.maxn = maxn; self.ops = []; self.done = 0
    def issue(self, tag=None): self.ops.append(tag)
    def wait(self, tags):
        last = -1
        for i in range(len(self.ops) - 1, -1, -1):
            if self.ops[i] in tags: last = i; break
        assert last >= 0, f"wait on never-issued op {tags}"
        n = last + 1
        if n <= self.done: return
        allowed = min(len(self.ops) - n, self.maxn)
        self.k(f"s_waitcnt {self.name}({allowed})")
        self.done = len(self.ops) - allowed
    def wait_all(self):
        if self.done < len(self.ops):
            self.k(f"s_waitcnt {self.name}(0)"); self.done = len(self.ops)

def srd(k, d, base, off, size):
    if off:
        k(f"s_add_u32 s{d}, s{base}, {off}"); k(f"s_addc_u32 s{d+1}, s{base+1}, 0")
    else:
        k(f"s_mov_b32 s{d}, s{base}"); k(f"s_mov_b32 s{d+1}, s{base+1}")
    k(f"s_mov_b32 s{d+2}, {size}"); k(f"s_mov_b32 s{d+3}, 0x20000")

def tile_map(k, mode, s_rb, s_cb, t0, t1):
    k(f"s_and_b32 s{t0}, s2, 7"); k(f"s_lshr_b32 s{t1}, s2, 3"); k(f"s_and_b32 s{t1}, s{t1}, 31")
    lr, lc = {"2x16": (1, 4), "4x8": (2, 3), "8x4": (3, 2)}[mode]
    xc = 4 - lc
    k(f"s_lshr_b32 s{s_rb}, s{t0}, {xc}"); k(f"s_lshl_b32 s{s_rb}, s{s_rb}, {lr}")
    k(f"s_lshr_b32 s{s_cb}, s{t1}, {lc}"); k(f"s_add_u32 s{s_rb}, s{s_rb}, s{s_cb}")
    k(f"s_and_b32 s{s_cb}, s{t0}, {(1<<xc)-1}"); k(f"s_lshl_b32 s{s_cb}, s{s_cb}, {lc}")
    k(f"s_and_b32 s{t1}, s{t1}, {(1<<lc)-1}"); k(f"s_add_u32 s{s_cb}, s{s_cb}, s{t1}")

class Dbg:
    def __init__(self, k, on, slot): self.k = k; self.on = on; self.n = 0; self.slot = slot
    def stamp(self):
        if not self.on: return
        i = self.n; self.n += 1
        self.k("s_memtime s[80:81]"); self.k("s_memrealtime s[82:83]"); self.k("s_waitcnt lgkmcnt(0)"); self.k(f"s_mov_b32 s{84+i}, s80"); self.k(f"s_mov_b32 s{90+i}, s82")
    def flush(self, ws):
        if not self.on: return
        k = self.k
        k("s_waitcnt vmcnt(0)"); self.stamp(); k("s_waitcnt lgkmcnt(0)")
        srd(k, 96, ws, WS_AUX + AUX_DBG + self.slot * 131072, 131072)
        k("v_lshrrev_b32 v1, 6, v0"); k("s_lshl_b32 s63, s2, 3"); k("v_add_u32 v1, s63, v1"); k("v_lshlrev_b32 v1, 6, v1")
        for i in range(self.n):
            k(f"v_mov_b32 v2, s{84+i}"); k(f"buffer_store_dword v2, v1, s[96:99], 0 offen offset:{4*i}")
            k(f"v_mov_b32 v2, s{90+i}"); k(f"buffer_store_dword v2, v1, s[96:99], 0 offen offset:{32+4*i}")

def p2(r): return f"v[{r}:{r+1}]"
def p4(r): return f"v[{r}:{r+3}]"

def gelu_block(k, items, T):
    n = len(items)
    for (c, cs, P0, P1) in items: k(f"v_pk_fma_f32 {p2(c)}, {p2(cs)}, {p2(P0)}, {p2(c)} op_sel_hi:[1,0,1]")
    for i, (c, cs, P0, P1) in enumerate(items): k(f"v_pk_mul_f32 {p2(T+2*i)}, {p2(c)}, {p2(c)}")
    for i, (c, cs, P0, P1) in enumerate(items): k(f"v_pk_fma_f32 {p2(T+2*i)}, {p2(T+2*i)}, {p2(P1)}, {p2(P1)} op_sel:[0,0,1] op_sel_hi:[1,0,1]")
    for i, (c, cs, P0, P1) in enumerate(items): k(f"v_pk_mul_f32 {p2(T+2*i)}, {p2(T+2*i)}, {p2(c)}")
    for i in range(2 * n): k(f"v_exp_f32 v{T+i}, v{T+i}")
    for i, (c, cs, P0, P1) in enumerate(items): k(f"v_pk_fma_f32 {p2(T+2*i)}, {p2(T+2*i)}, {p2(P0)}, {p2(P0)} op_sel:[0,1,1] op_sel_hi:[1,1,1]")
    for i in range(2 * n): k(f"v_rcp_f32 v{T+i}, v{T+i}")
    for i, (c, cs, P0, P1) in enumerate(items): k(f"v_pk_mul_f32 {p2(c)}, {p2(c)}, {p2(T+2*i)}")

def gelu_consts(k, vR, vmean, P0, P1, t):
    k(f"v_sub_f32 v{P0}, 0, v{vmean}")
    k(f"v_rcp_f32 v{P0+1}, v{vR}")
    k(f"v_mul_f32 v{t}, v{vR}, v{vR}")
    k(f"v_mul_f32 v{P1+1}, {hx32(-C0)}, v{vR}")
    k(f"v_mul_f32 v{t}, {hx32(0.044715)}, v{t}")
    k(f"v_mul_f32 v{P1}, v{t}, v{P1+1}")

def wave_lane(k, s_w, v_lane, vt):
    k(f"v_lshrrev_b32 v{vt}, 6, v0"); k(f"v_and_b32 v{v_lane}, 63, v0"); k(f"v_readfirstlane_b32 s100, v{vt}"); k("s_nop 0")
    k(f"s_and_b32 s{s_w}, s100, 3"); k("s_lshr_b32 s3, s100, 2")

ST = " sc1"

def spin_wait(k, vm, tag, vdst, vaddr, srd_, soff, need):
    ok = k.newlab("fok"); sp = k.newlab("fsp")
    vm.wait([tag])
    k("s_mov_b32 s57, 0")
    k.label(sp)
    k(f"v_readfirstlane_b32 s56, v{vdst}"); k("s_nop 0"); k(f"s_cmp_ge_u32 s56, {need}"); k(f"s_cbranch_scc1 {ok}")
    k("s_add_u32 s57, s57, 1"); k(f"s_cmp_ge_u32 s57, {1<<18}"); k(f"s_cbranch_scc1 {ok}")
    k("s_sleep 2"); k(f"buffer_load_dword v{vdst}, v{vaddr}, s[{srd_}:{srd_+3}], {soff} offen sc1"); k("s_waitcnt vmcnt(0)"); k(f"s_branch {sp}")
    k.label(ok)

def unpack(k, dst, src):
    k(f"v_lshlrev_b32 v{dst}, 16, v{src}"); k(f"v_and_b32 v{dst+1}, 0xffff0000, v{src}")

def qtile_addr(k, VL, s_tb, s_cb, vq_even, vq_odd, t):
    k(f"v_lshrrev_b32 v{t}, 3, v{VL}"); k(f"v_and_b32 v{t+1}, 7, v{VL}")
    k(f"v_lshrrev_b32 v{t+2}, 4, v{VL}"); k(f"v_xor_b32 v{t+2}, v{t+2}, v{t+1}")
    k(f"s_lshl_b32 s24, s{s_tb}, 4"); k(f"v_add_u32 v{t+3}, s24, v{t}"); k(f"v_lshlrev_b32 v{t+3}, 11, v{t+3}")
    k(f"s_lshl_b32 s24, s{s_cb}, 7"); k(f"v_add_u32 v{t+3}, s24, v{t+3}")
    k(f"v_lshl_add_u32 v{vq_even}, v{t+2}, 4, v{t+3}")
    k(f"v_xor_b32 v{t+2}, 4, v{t+2}"); k(f"v_lshl_add_u32 v{vq_odd}, v{t+2}, 4, v{t+3}")

def qtile_rd_addr(k, VL, s_base, dst, t):
    k(f"v_and_b32 v{t}, 15, v{VL}"); k(f"v_lshlrev_b32 v{t+1}, 7, v{t}")
    k(f"v_bfe_u32 v{t+2}, v{VL}, 4, 1"); k(f"v_lshl_add_u32 v{t+1}, v{t+2}, 3, v{t+1}")
    k(f"v_add_u32 v{t+1}, s{s_base}, v{t+1}")
    k(f"v_lshrrev_b32 v{t}, 1, v{t}"); k(f"v_lshrrev_b32 v{t+2}, 5, v{VL}"); k(f"v_xor_b32 v{t}, v{t}, v{t+2}")
    for j in range(4):
        k(f"v_xor_b32 v{t+2}, {2*j}, v{t}"); k(f"v_lshl_add_u32 v{dst+j}, v{t+2}, 4, v{t+1}")


def pa4(r): return f"a[{r}:{r+3}]"

def half_map(k, s_rb, s_cb, t0, t1):
    k(f"s_and_b32 s{t0}, s2, 7"); k(f"s_lshr_b32 s{t1}, s2, 3"); k(f"s_and_b32 s{t1}, s{t1}, 15")
    k(f"s_lshr_b32 s{s_rb}, s{t0}, 1"); k(f"s_lshl_b32 s{s_rb}, s{s_rb}, 2"); k(f"s_lshr_b32 s{s_cb}, s{t1}, 2"); k(f"s_add_u32 s{s_rb}, s{s_rb}, s{s_cb}")
    k(f"s_and_b32 s{s_cb}, s{t0}, 1"); k(f"s_lshl_b32 s{s_cb}, s{s_cb}, 2"); k(f"s_and_b32 s{t1}, s{t1}, 3"); k(f"s_add_u32 s{s_cb}, s{s_cb}, s{t1}")

def publish(k, vm, VL, srd_, soff):
    vm.wait_all(); k("s_barrier")
    lab = k.newlab("pub")
    k("s_cmp_lg_u32 s100, 0"); k(f"s_cbranch_scc1 {lab}")
    k(f"v_lshlrev_b32 v4, 20, v{VL}"); k("v_mov_b32 v5, 1")
    k(f"buffer_atomic_add v5, v4, s[{srd_}:{srd_+3}], {soff} offen sc1")
    k.label(lab)

def colsum_reduce(k, vm, regs, tags, CL, U, S, srd_out, s_off, split):
    for i, r in enumerate(regs):
        tags[i]()
        for j in range(4): unpack(k, S + 2 * j if i == 0 else U + 2 * j, r + j)
        if i:
            for j in range(4): k(f"v_pk_add_f32 {p2(S+2*j)}, {p2(S+2*j)}, {p2(U+2*j)}")
    k("v_lshlrev_b32 v4, 5, v0"); k(f"v_add_u32 v4, {CL}, v4")
    k(f"ds_write_b128 v4, {p4(S)}"); k(f"ds_write_b128 v4, {p4(S+4)} offset:16")
    k("s_waitcnt lgkmcnt(0)"); k("s_barrier")
    k("v_and_b32 v4, 127, v0"); k("v_lshlrev_b32 v4, 2, v4"); k(f"v_add_u32 v5, {CL}, v4")
    if split: k("s_lshl_b32 s101, s3, 13"); k("v_add_u32 v5, s101, v5")
    np_ = 16 if split else 32
    for i in range(np_): k(f"ds_read_b32 v{U+i}, v5 offset:{512*i}")
    k("s_waitcnt lgkmcnt(0)")
    for i in range(1, np_): k(f"v_add_f32 v{U}, v{U}, v{U+i}")
    k(f"buffer_store_dword v{U}, v4, s[{srd_out}:{srd_out+3}], {s_off} offen{ST}"); vm.issue("st")


def code_warm(k, vm, VL, lo, hi, S, vt, per=32, fwd=True, mask=31):
    if OPT.get("nocw"): return
    lab = k.newlab("pc")
    k(f"s_getpc_b64 s[{S}:{S+1}]"); k.label(lab)
    k(f"s_add_u32 s{S}, s{S}, {lo}-{lab}"); k(f"s_addc_u32 s{S+1}, s{S+1}, {'0' if fwd else '-1'}")
    k(f"s_mov_b32 s{S+2}, {hi}-{lo}"); k(f"s_mov_b32 s{S+3}, 0x20000")
    k("s_lshr_b32 s24, s2, 3"); k(f"s_and_b32 s24, s24, {mask}"); k(f"s_mul_i32 s24, s24, {per*128}")
    k("s_cmp_lg_u32 s20, 3"); k(f"s_cselect_b32 s{S+2}, 0, s{S+2}")
    k(f"v_cmp_gt_u32 vcc, {per}, v{VL}"); k(f"v_lshlrev_b32 v{vt}, 7, v{VL}"); k(f"v_mov_b32 v{vt+1}, 0x80000000")
    k(f"v_cndmask_b32 v{vt}, v{vt+1}, v{vt}, vcc")
    k(f"buffer_load_dword v255, v{vt}, s[{S}:{S+3}], s24 offen"); vm.issue("cw")

W8 = True
F_H = 0; F_X = 64; F_G = 128; F_KV = 256; F_Y = 320; F_C3 = 336; F_P = 512
TOP = 163840
def FL(i): return AUX_FLG + 128 * i

def wave_publish(k, srd_aux, s_off, va=30):
    k("s_waitcnt vmcnt(0)")
    k(f"v_lshlrev_b32 v{va}, 22, v{VL}"); k(f"v_mov_b32 v{va+1}, 1")
    k(f"buffer_atomic_add v{va+1}, v{va}, s[{srd_aux}:{srd_aux+3}], {s_off} offen sc1")

def poll(k, srd_, s_off, need, vz, vd):
    ok = k.newlab("pok"); sp = k.newlab("psp")
    k("s_mov_b32 s57, 0")
    k.label(sp)
    k(f"buffer_load_dword v{vd}, v{vz}, s[{srd_}:{srd_+3}], {s_off} offen sc1"); k("s_waitcnt vmcnt(0)")
    k(f"v_readfirstlane_b32 s56, v{vd}"); k("s_add_u32 s57, s57, 1"); k(f"s_cmp_ge_u32 s56, {need}"); k(f"s_cbranch_scc1 {ok}")
    k(f"s_cmp_ge_u32 s57, {1<<18}"); k(f"s_cbranch_scc1 {ok}")
    k("s_sleep 1"); k(f"s_branch {sp}")
    k.label(ok)
VL = 3

class Loader:
    def __init__(self, kl):
        self.k = kl; self.vm = Track(kl, "vmcnt", 63); self.lg = Track(kl, "lgkmcnt", 15)
class Both:
    def __init__(self, a, b): self.a = a; self.b = b
    def __call__(self, x): self.a(x); self.b(x)

def side1(k, dbg, end_label):
    vm = Track(k, "vmcnt", 63); lg = Track(k, "lgkmcnt", 15); D = Dbg(k, dbg, 1)
    k(f"s_load_dwordx4 s[28:31], s[0:1], {ARG['q']}")
    k(f"s_load_dwordx4 s[32:35], s[0:1], {ARG['v']}")
    k(f"s_load_dwordx4 s[36:39], s[0:1], {ARG['w1']}")
    k(f"s_load_dwordx4 s[40:43], s[0:1], {ARG['dbg']}")
    k(f"s_load_dwordx2 s[44:45], s[0:1], {ARG['ssmk']}")
    D.stamp()
    wave_lane(k, 20, VL, 2)
    k("s_and_b32 s21, s2, 7"); k("s_lshr_b32 s22, s2, 3")
    k("s_lshl_b32 s23, s21, 8"); k("s_lshl_b32 s24, s22, 4"); k("s_add_u32 s23, s23, s24"); k("s_lshl_b32 s24, s100, 1"); k("s_add_u32 s23, s23, s24")
    k("s_lshl_b32 s24, s23, 11"); k(f"v_lshl_add_u32 v6, v{VL}, 4, s24")
    k("s_and_b32 s25, s21, 1"); k("s_lshl_b32 s25, s25, 2"); k("s_lshr_b32 s24, s21, 1"); k("s_add_u32 s25, s25, s24")
    k("s_lshl_b32 s24, s22, 6"); k("s_lshl_b32 s26, s100, 3"); k("s_add_u32 s24, s24, s26")
    k(f"v_lshrrev_b32 v7, 4, v{VL}"); k("v_add_u32 v7, s24, v7"); k("v_lshlrev_b32 v7, 11, v7")
    k(f"v_and_b32 v8, 15, v{VL}"); k("v_lshl_add_u32 v7, v8, 4, v7"); k("s_lshl_b32 s24, s25, 8"); k("v_add_u32 v7, s24, v7")
    k("s_waitcnt lgkmcnt(0)")
    srd(k, 4, 28, 0, 4 * MB); srd(k, 8, 36, 0, 2 * MB)
    QR = 32; CR = 64
    code_warm(k, vm, VL, KNAME, "code_end", 72, 252, 32, fwd=False)
    for r in range(2):
        for h in range(2):
            k(f"buffer_load_dwordx4 {p4(QR+8*r+4*h)}, v6, s[4:7], 0 offen offset:{2048*r+1024*h}"); vm.issue(("q", r))
    k("s_movk_i32 s27, 8192")
    for n in range(2):
        k(f"buffer_load_dwordx4 {p4(CR+4*n)}, v7, s[8:11], {'s27' if n else '0'} offen"); vm.issue(("c", n))
    srd(k, 12, 42, WS_AUX, AUX_SIZE); srd(k, 16, 40, 0, 256)
    srd(k, 48, 30, 0, 4 * MB); srd(k, 52, 32, 0, 4 * MB); srd(k, 56, 34, 0, 8192); srd(k, 60, 42, WS_KV, 4 * MB)
    srd(k, 64, 38, 0, 2 * MB); srd(k, 68, 44, 0, 4 * MB)
    k("s_lshl_b32 s24, s2, 11"); k(f"s_add_u32 s24, s24, {AUX_FLG}"); k("v_lshl_add_u32 v12, v0, 2, s24"); k("v_mov_b32 v14, 0")
    k("buffer_store_dword v14, v12, s[12:15], 0 offen sc1"); vm.issue("z")
    k("s_lshl_b32 s47, s21, 1"); k("s_add_u32 s47, s47, s3")
    k(f"v_and_b32 v26, 7, v{VL}"); k(f"v_lshrrev_b32 v27, 3, v{VL}")
    k("s_lshl_b32 s26, s22, 7"); k("s_lshl_b32 s27, s20, 5"); k("s_add_u32 s26, s26, s27")
    k("v_lshl_add_u32 v28, v27, 2, s26")
    k("v_lshlrev_b32 v29, 11, v28"); k("v_lshl_add_u32 v29, v26, 4, v29")
    k("s_lshl_b32 s26, s47, 7"); k("v_add_u32 v29, s26, v29")
    k("v_subrev_u32 v30, 6144, v29"); k("v_cmp_eq_u32 vcc, 0, v28"); k("v_mov_b32 v28, 0x80000000")
    k("s_lshl_b32 s26, s47, 9"); k("v_lshl_add_u32 v31, v26, 6, s26")
    k("v_cndmask_b32 v30, v30, v28, vcc")
    k("s_movk_i32 s46, 4096")
    KR = 188; VR = 216; SK = 232
    def kv_loads():
        for i in range(4): k(f"buffer_load_dwordx4 {p4(SK+4*i)}, v31, s[56:59], 0 offen offset:{16*i}"); vm.issue("sk")
        for d in range(7):
            base, dd = (30, d) if d < 3 else (29, d - 3)
            k(f"buffer_load_dwordx4 {p4(KR+4*d)}, v{base}, s[48:51], {'s46' if dd >= 2 else '0'} offen offset:{2048*(dd%2)}"); vm.issue(("k", d))
        for d in range(4):
            k(f"buffer_load_dwordx4 {p4(VR+4*d)}, v29, s[52:55], {'s46' if d >= 2 else '0'} offen offset:{2048*(d%2)}"); vm.issue(("v", d))
    def later():
        k("s_lshl_b32 s24, s2, 3"); k("s_add_u32 s24, s24, s100")
        if OPT.get("ssm1", 1):
            k(f"v_lshrrev_b32 v8, 5, v{VL}"); k("v_lshlrev_b32 v8, 24, v8"); k(f"v_lshl_add_u32 v8, v{VL}, 7, v8"); k("s_lshl_b32 s26, s24, 12")
            k("buffer_load_dword v9, v8, s[68:71], s26 offen"); vm.issue("t")
        if OPT.get("w2x", 1):
            k("s_lshl_b32 s26, s22, 3"); k("s_add_u32 s26, s26, s100"); k("s_lshl_b32 s26, s26, 14"); k("s_and_b32 s27, s21, 1"); k("s_lshl_b32 s27, s27, 10"); k("s_add_u32 s26, s26, s27")
            k(f"v_lshrrev_b32 v8, 3, v{VL}"); k("v_lshlrev_b32 v8, 11, v8"); k(f"v_and_b32 v10, 7, v{VL}"); k("v_lshl_add_u32 v8, v10, 7, v8")
        else:
            k(f"v_lshrrev_b32 v8, 4, v{VL}"); k("v_lshlrev_b32 v8, 24, v8"); k(f"v_lshl_add_u32 v8, v{VL}, 7, v8"); k("s_lshl_b32 s26, s24, 11")
        k("buffer_load_dword v9, v8, s[64:67], s26 offen"); vm.issue("t")
    U = 96
    def wave_sum(R, n):
        for ctl in ["quad_perm:[1,0,3,2]", "quad_perm:[2,3,0,1]", "row_half_mirror", "row_mirror"]:
            for r in range(n): k(f"v_add_f32_dpp v{R+r}, v{R+r}, v{R+r} {ctl} row_mask:0xf bank_mask:0xf")
            k("s_nop 0")
        for sw in ["v_permlane16_swap_b32", "v_permlane32_swap_b32"]:
            for r in range(n): k(f"v_mov_b32 v{R+n+r}, v{R+r}")
            k("s_nop 1")
            for r in range(n): k(f"{sw} v{R+r}, v{R+n+r}")
            k("s_nop 1")
            for r in range(n): k(f"v_add_f32 v{R+r}, v{R+r}, v{R+n+r}")
            k("s_nop 1")
    SM = 16; SQ = 20; T2 = 160
    for r in range(2):
        vm.wait([("q", r)])
        for j in range(8): unpack(k, U + 16 * r + 2 * j, QR + 8 * r + j)
        k(f"v_pk_add_f32 {p2(T2+2*r)}, {p2(U+16*r)}, {p2(U+16*r+2)}")
        for j in range(2, 8): k(f"v_pk_add_f32 {p2(T2+2*r)}, {p2(T2+2*r)}, {p2(U+16*r+2*j)}")
    if OPT.get("kvearly", 1): vm.wait([("c", 1)]); kv_loads()
    for r in range(2): k(f"v_add_f32 v{SM+r}, v{T2+2*r}, v{T2+2*r+1}")
    k("s_nop 1"); wave_sum(SM, 2)
    for r in range(2): k(f"v_mul_f32 v{T2+8+2*r}, {hx32(-1/1024)}, v{SM+r}")
    for r in range(2):
        for j in range(8): k(f"v_pk_add_f32 {p2(U+16*r+2*j)}, {p2(U+16*r+2*j)}, {p2(T2+8+2*r)} op_sel_hi:[1,0]")
        k(f"v_pk_mul_f32 {p2(T2+2*r)}, {p2(U+16*r)}, {p2(U+16*r)}")
        for j in range(1, 8): k(f"v_pk_fma_f32 {p2(T2+2*r)}, {p2(U+16*r+2*j)}, {p2(U+16*r+2*j)}, {p2(T2+2*r)}")
    for r in range(2): k(f"v_add_f32 v{SQ+r}, v{T2+2*r}, v{T2+2*r+1}")
    k("s_nop 1"); wave_sum(SQ, 2)
    k(f"v_cmp_eq_u32 vcc, 1, v{VL}"); k("s_nop 1")
    k(f"v_cndmask_b32 v{SM}, v{SM}, v{SM+1}, vcc"); k(f"v_cndmask_b32 v{SQ}, v{SQ}, v{SQ+1}, vcc")
    k(f"v_mul_f32 v10, {hx32(1/1024)}, v{SM}")
    k(f"v_mov_b32 v12, {hx32(1e-5)}"); k(f"v_fmac_f32 v12, {hx32(1/1024)}, v{SQ}"); k("v_rsq_f32 v11, v12")
    k("s_lshl_b32 s24, s23, 3"); k(f"s_add_u32 s24, s24, {AUX_ST1}")
    k(f"v_lshrrev_b32 v8, 1, v{VL}"); k("v_lshlrev_b32 v8, 22, v8"); k(f"v_lshl_add_u32 v8, v{VL}, 3, v8")
    k(f"buffer_store_dwordx2 v[10:11], v8, s[12:15], s24 offen{ST}"); vm.issue("st")
    k("s_lshl_b32 s24, s22, 12"); k("s_lshl_b32 s26, s25, 9"); k("s_add_u32 s24, s24, s26"); k(f"s_add_u32 s24, s24, {AUX_CS1}")
    colsum_reduce(k, vm, [CR, CR + 4], [lambda n=n: vm.wait([("c", n)]) for n in range(2)], 0, 96, 128, 12, "s24", False)
    publish(k, vm, VL, 16, "0")
    D.stamp()
    if not OPT.get("kvearly", 1): kv_loads()
    later()
    k("s_lshl_b32 s27, s3, 14"); k("s_add_u32 s27, s27, 16384")
    k("v_lshrrev_b32 v13, 1, v27"); k("s_lshl_b32 s26, s20, 2"); k("v_add_u32 v13, s26, v13"); k("v_xor_b32 v13, v13, v26")
    k("v_lshlrev_b32 v13, 4, v13"); k("v_lshl_add_u32 v13, v26, 11, v13")
    k("v_and_b32 v14, 1, v27"); k("v_lshl_add_u32 v13, v14, 3, v13"); k("v_add_u32 v13, s27, v13")
    k(f"v_lshrrev_b32 v14, 4, v{VL}"); k("s_lshl_b32 s26, s20, 4"); k("v_add_u32 v14, s26, v14")
    k(f"v_and_b32 v15, 15, v{VL}"); k("s_lshl_b32 s26, s20, 1"); k("v_xor_b32 v16, s26, v15")
    k("v_lshlrev_b32 v17, 8, v14"); k("v_add_u32 v17, s27, v17"); k("v_lshl_add_u32 v18, v16, 4, v17")
    k("v_xor_b32 v16, 1, v16"); k("v_lshl_add_u32 v19, v16, 4, v17")
    k("s_lshl_b32 s26, s47, 6"); k("v_add_u32 v14, s26, v14"); k("v_lshlrev_b32 v14, 12, v14")
    k("v_lshl_add_u32 v14, v15, 4, v14"); k("s_lshl_b32 s26, s22, 8"); k("v_add_u32 v14, s26, v14")
    WW = 32; UK = 64; UV = 120; O = 152
    vm.wait(["sk"])
    for e in range(8):
        for d in range(4):
            src = SK + 2 * e + d // 2; dst = WW + 8 * d + e
            k(f"v_lshlrev_b32 v{dst}, 16, v{src}" if d % 2 == 0 else f"v_and_b32 v{dst}, 0xffff0000, v{src}")
    for d in range(7):
        vm.wait([("k", d)])
        for j in range(4): unpack(k, UK + 8 * d + 2 * j, KR + 4 * d + j)
    for tk in range(4):
        for j in range(4): k(f"v_pk_mul_f32 {p2(O+8*tk+2*j)}, {p2(UK+8*(tk+3)+2*j)}, {p2(WW+2*j)}")
        for d in range(1, 4):
            for j in range(4):
                k(f"v_pk_fma_f32 {p2(O+8*tk+2*j)}, {p2(UK+8*(tk+3-d)+2*j)}, {p2(WW+8*d+2*j)}, {p2(O+8*tk+2*j)}")
    for tk in range(4):
        vm.wait([("v", tk)])
        for j in range(4): unpack(k, UV + 8 * tk + 2 * j, VR + 4 * tk + j)
        for j in range(4): k(f"v_pk_mul_f32 {p2(O+8*tk+2*j)}, {p2(O+8*tk+2*j)}, {p2(UV+8*tk+2*j)}")
    D.stamp()
    for e in range(8):
        k(f"v_cvt_pk_bf16_f32 v{KR+2*e}, v{O+e}, v{O+8+e}"); k(f"v_cvt_pk_bf16_f32 v{KR+2*e+1}, v{O+16+e}, v{O+24+e}")
        k(f"ds_write_b64 v13, {p2(KR+2*e)} offset:{256*e}"); lg.issue("w")
    lab = k.newlab("np"); k("v_mov_b32 v4, 0"); k("s_cmp_lg_u32 s100, 0"); k(f"s_cbranch_scc1 {lab}")
    poll(k, 16, "0", 128, 4, 5)
    k.label(lab)
    lg.wait_all(); k("s_barrier")
    for i in range(4):
        k(f"ds_read_b128 {p4(VR+4*i)}, v{18 if i < 2 else 19} offset:{1024*i}"); lg.issue(("r", i))
    for i in range(4):
        lg.wait([("r", i)]); k(f"s_mov_b32 s26, {4*i*4096}")
        k(f"buffer_store_dwordx4 {p4(VR+4*i)}, v14, s[60:63], s26 offen{ST}"); vm.issue("st")
    k("s_lshl_b32 s26, s47, 2"); k("s_add_u32 s26, s26, s20"); k("s_lshl_b32 s26, s26, 7"); k(f"s_add_u32 s26, s26, {FL(F_KV)}")
    wave_publish(k, 12, "s26")
    D.stamp(); D.flush(42)
    k("s_barrier")

def side2(k, dbg, end_label, csat=14):
    vm = Track(k, "vmcnt", 63); lg = Track(k, "lgkmcnt", 15); D = Dbg(k, dbg, 2)
    XP = 256; HP = 32; XO = 0; HO = XP + 4096; WB = HO + HP + 4096; OO = XO + XP; WL = 8 * WB
    k(f"s_load_dwordx4 s[28:31], s[0:1], {ARG['ssmk']}")
    k(f"s_load_dwordx2 s[32:33], s[0:1], {ARG['w3']}")
    k(f"s_load_dwordx2 s[42:43], s[0:1], {ARG['ws']}")
    D.stamp()
    wave_lane(k, 20, VL, 2)
    k("s_lshl_b32 s21, s2, 3"); k("s_add_u32 s21, s21, s100")
    k("s_lshl_b32 s24, s21, 12"); k(f"v_lshl_add_u32 v1, v{VL}, 4, s24")
    k(f"s_mul_i32 s26, s100, {WB}")
    k("s_lshl_b32 s24, s21, 1"); k("v_mov_b32 v4, s24"); k("v_mov_b32 v6, 0"); k("v_mov_b32 v5, 0")
    k("s_waitcnt lgkmcnt(0)")
    srd(k, 4, 42, WS_KV, 4 * MB); srd(k, 8, 28, 0, 4 * MB); srd(k, 12, 30, 0, 2048)
    srd(k, 64, 42, WS_AUX, AUX_SIZE)
    k(f"s_add_u32 m0, s26, {HO+HP}"); k("s_nop 0")
    for i in range(4): k(f"buffer_load_dwordx4 v1, s[8:11], 0 offen offset:{1024*i} lds"); vm.issue(("h", i))
    k("buffer_load_short_d16_hi v6, v4, s[12:15], 0 offen"); vm.issue("D")
    srd(k, 16, 32, 0, 1024 * 7168); srd(k, 52, 42, WS_AUX + AUX_CS3, 8 * 3584 * 4)
    k(f"v_lshl_add_u32 v8, v{VL}, 2, s26"); k("ds_write_b32 v8, v5"); lg.issue("z")
    k(f"v_and_b32 v8, 7, v{VL}"); k("v_lshl_add_u32 v8, v8, 2, s26"); k(f"ds_write_b32 v8, v5 offset:{HO}"); lg.issue("z")
    k("s_lshl_b32 s24, s3, 7"); k("s_add_u32 s24, s24, s2"); k("s_mul_i32 s25, s24, 2341"); k("s_lshr_b32 s58, s25, 16")
    k("s_mul_i32 s25, s58, 28"); k("s_sub_u32 s59, s24, s25")
    k("s_lshl_b32 s24, s58, 7"); k("s_lshl_b32 s25, s20, 5"); k("s_add_u32 s24, s24, s25"); k("s_lshl_b32 s25, s59, 8")
    k(f"v_lshrrev_b32 v8, 4, v{VL}"); k("v_add_u32 v8, s24, v8"); k("v_mul_u32_u24 v8, 7168, v8")
    k(f"v_and_b32 v9, 15, v{VL}"); k("v_lshl_add_u32 v8, v9, 4, v8"); k("v_add_u32 v20, s25, v8")
    k("s_lshl_b32 s27, s100, 13"); k(f"s_add_u32 s27, s27, {WL}"); k(f"v_lshl_add_u32 v21, v{VL}, 4, s27")
    k(f"v_lshrrev_b32 v12, 4, v{VL}"); k("v_lshlrev_b32 v12, 3, v12")
    k(f"v_bfe_u32 v13, v{VL}, 2, 2"); k("v_add_u32 v12, v12, v13"); k("v_lshlrev_b32 v12, 3, v12")
    k(f"v_and_b32 v13, 3, v{VL}")
    k("v_lshlrev_b32 v14, 5, v13"); k("v_sub_u32 v14, v14, v12"); k(f"s_add_u32 s24, s26, {XO+XP+24-32}"); k("v_add_u32 v14, s24, v14")
    k("v_lshl_add_u32 v15, v13, 3, v12"); k(f"s_add_u32 s24, s26, {HO+HP-24}"); k("v_add_u32 v15, s24, v15")
    k(f"v_lshl_add_u32 v16, v{VL}, 1, s26"); k(f"v_lshl_add_u32 v19, v{VL}, 4, s26")
    k(f"v_cmp_lt_u32 s[44:45], 62, v{VL}"); k(f"v_cmp_lt_u32 s[46:47], 61, v{VL}"); k(f"v_cmp_lt_u32 s[48:49], 60, v{VL}")
    AFR = 64; BFR = 192; AC = 32; XV = [17, 18]; TM = [8, 9, 10, 11, 12, 13]
    for r in XV: k(f"v_mov_b32 v{r}, 0")
    for i in range(4): k(f"v_mov_b32 v{AC+12+i}, 0")
    def rd_A(d):
        vm.wait([("x", (64 * d + 63) // 512)])
        for u in range(2):
            k(f"ds_read_b64_tr_b16 {p2(AFR+4*d+2*u)}, v14 offset:{128*d + 32*(1-u)}"); lg.issue(("A", d))
    def rd_B(s):
        vm.wait([("h", (128 * s + 127) // 512)])
        for u in range(2):
            k(f"ds_read_b64_tr_b16 {p2(BFR+4*s+2*u)}, v15 offset:{256*s + 32*u}"); lg.issue(("B", s))
    k("s_lshr_b32 s24, s21, 4"); k("s_lshl_b32 s24, s24, 7"); k(f"s_add_u32 s24, s24, {FL(F_KV)}")
    poll(k, 64, "s24", 16, 5, 22); vm.done = len(vm.ops)
    k(f"s_add_u32 m0, s26, {XO+XP}"); k("s_nop 0")
    for i in range(4): k(f"buffer_load_dwordx4 v1, s[4:7], 0 offen offset:{1024*i} sc1 lds"); vm.issue(("x", i))
    D.stamp()
    rd_B(0); rd_A(0); rd_A(1); rd_B(1); rd_A(2)
    def rdx(T): k(f"ds_read_u16_d16_hi v{XV[T%2]}, v16 offset:{XO+XP+128*T}"); lg.issue(("xv", T))
    def epi(T):
        c = AC + 4 * (T % 4); p = AC + 4 * ((T - 1) % 4); t = TM[3 * (T % 2):]; xv = XV[T % 2]
        L = []
        L.append(lambda: k(f"v_cndmask_b32 v{t[2]}, v{c+3}, v{p+3}, s[48:49]"))
        L.append(lambda: k(f"v_cndmask_b32 v{t[1]}, v{c+2}, v{p+2}, s[46:47]"))
        L.append(lambda: k(f"v_cndmask_b32 v{t[0]}, v{c+1}, v{p+1}, s[44:45]"))
        L.append(lambda: k(f"v_add_f32_dpp v{t[1]}, v{t[2]}, v{t[1]} wave_ror:1 row_mask:0xf bank_mask:0xf"))
        def fx():
            lg.wait([("xv", T)]); k(f"v_fma_f32 v{t[2]}, v{xv}, v6, v{c}")
            if T + 2 < 32: rdx(T + 2)
            else: k("s_nop 0")
        L.append(fx)
        L.append(lambda: k(f"v_add_f32_dpp v{t[0]}, v{t[1]}, v{t[0]} wave_ror:1 row_mask:0xf bank_mask:0xf"))
        L.append(lambda: k("s_nop 1"))
        L.append(lambda: k(f"v_add_f32_dpp v{t[2]}, v{t[0]}, v{t[2]} wave_ror:1 row_mask:0xf bank_mask:0xf"))
        L.append(lambda: k(f"v_cvt_pk_bf16_f32 v{t[2]}, v{t[2]}, v{t[2]}"))
        def wr(): k(f"ds_write_b16 v16, v{t[2]} offset:{OO+128*T}"); lg.issue("o")
        L.append(wr)
        return L
    rdx(0); rdx(1)
    for T in range(34):
        pend = epi(T - 2) if T >= 2 else []
        if csat <= T < csat + 8:
            i = T - csat
            k(f"s_add_u32 m0, s27, {1024*i}"); k(f"s_mov_b32 s24, {i*4*7168}")
            k("buffer_load_dwordx4 v20, s[16:19], s24 offen lds"); vm.issue("c")
        if T < 32:
            if T + 3 < 32: rd_A(T + 3)
            if T % 2 == 0 and T // 2 + 2 < 16: rd_B(T // 2 + 2)
            c = AC + 4 * (T % 4)
            if T == 2: k("s_nop 7")
            ns = T // 2 + 1
            per = 2 if ns < 10 else 1
            for st in range(ns):
                lg.wait([("A", T - 2 * st), ("B", st)])
                k(f"v_mfma_f32_16x16x32_bf16 {p4(c)}, {p4(AFR+4*(T-2*st))}, {p4(BFR+4*st)}, {'0' if st == 0 else p4(c)}")
                for _ in range(per):
                    if pend: pend.pop(0)()
        while pend: pend.pop(0)()
    D.stamp()
    for i in range(4):
        k(f"ds_read_b128 {p4(48+4*i)}, v19 offset:{OO+1024*i}"); lg.issue(("ob", i))
    for i in range(4):
        lg.wait([("ob", i)])
        k(f"buffer_store_dwordx4 {p4(48+4*i)}, v1, s[4:7], 0 offen offset:{1024*i}{ST}"); vm.issue("st")
    k("s_lshr_b32 s24, s21, 6"); k("s_lshl_b32 s24, s24, 7"); k(f"s_add_u32 s24, s24, {FL(F_Y)}")
    wave_publish(k, 64, "s24"); vm.done = len(vm.ops); D.stamp()
    for i in range(8): k(f"ds_read_b128 {p4(64+4*i)}, v21 offset:{1024*i}"); lg.issue(("cr", i))
    k("s_mul_i32 s24, s58, 14336"); k("s_lshl_b32 s25, s59, 9"); k("s_add_u32 s24, s24, s25")
    colsum_reduce(k, vm, [64 + 4 * i for i in range(8)], [lambda i=i: lg.wait([("cr", i)]) for i in range(8)], WL + 65536, 160, 176, 52, "s24", True)
    D.flush(42)
    srd(k, 68, 42, WS_AUX + FL(F_C3), 128)
    vm.issue("x"); publish(k, vm, VL, 68, "0")
    assert WL + 65536 + 16384 <= TOP

def gemm128(k, kl, which, dbg, NSLOT=None, RA=5, DEFER=3, rot=None, xbf=False, PRE=2, RAMP=2, APRE=3):
    if rot is None: rot = which == 1
    G1, G2, G4 = which == 1, which == 2, which == 4
    NSLOT = NSLOT or (4 if G1 else 6)
    NST = 28 if G4 else 16; STG = 16384; AL = NSLOT * STG
    if not G4: DEFER = 0
    vm = Track(k, "vmcnt", 63); lg = Track(k, "lgkmcnt", 15); D = Dbg(k, dbg, which)
    LD = Loader(kl); nm = f"g{which}"; kc = k; k = Both(kc, kl)
    ACC = 32; WF = 96; AR = 128; EP = AR + (32 if G1 else 16 * RA)
    VA = [4, 5]; VR = 8; VR2 = 16; VX = [6, 7]; VS = 24; VAR = 26
    k(f"s_load_dwordx4 s[28:31], s[0:1], {ARG[f'w{which}']}")
    k(f"s_load_dwordx4 s[40:43], s[0:1], {ARG['dbg']}")
    k(f"s_load_dwordx2 s[32:33], s[0:1], {ARG['q']}")
    D.stamp()
    if G4:
        tile_map(k, "4x8", 21, 22, 24, 25)
        k("s_lshr_b32 s58, s22, 3"); k("s_and_b32 s22, s22, 7")
        k("s_lshl_b32 s59, s22, 1"); k("s_add_u32 s59, s59, s58")
    else:
        half_map(k, 21, 22, 24, 25)
    wave_lane(k, 20, VL, 2)
    k("s_lshl_b32 s23, s21, 3"); k("s_lshl_b32 s24, s20, 1"); k("s_add_u32 s23, s23, s24")
    if G1:
        k("s_lshr_b32 s24, s22, 2"); k("s_add_u32 s24, s24, 1")
        k("s_sub_u32 s25, 0, s24"); k("s_bitcmp1_b32 s22, 1"); k("s_cselect_b32 s34, s24, s25")
        k("s_lshl_b32 s24, s23, 4"); k("s_add_u32 s35, s24, s34")
        k(f"s_mul_i32 s26, s20, {NSLOT*4096}"); k(f"s_add_u32 s26, s26, {AL}")
    else:
        k("s_lshl_b32 s26, s20, 13"); k(f"s_add_u32 s26, s26, {TOP-32768}")
    ash = 7 if G1 else 11
    if rot:
        k("s_add_u32 s24, s21, s22"); k("s_and_b32 s24, s24, 3"); k("s_lshl_b32 s47, s24, 19"); k(f"s_lshl_b32 s46, s24, {ash+2}")
    else:
        k("s_mov_b32 s46, 0"); k("s_mov_b32 s47, 0")
    k = kc
    VW = [4, 5, 6, 7]; LA = [8, 9, 10, 11]
    kl(f"v_lshrrev_b32 v28, 4, v{VL}"); kl(f"v_and_b32 v29, 15, v{VL}")
    kl("v_lshlrev_b32 v30, 1, v28"); kl("v_xor_b32 v29, v29, v30")
    kl("s_lshl_b32 s24, s20, 4")
    if G4: kl("s_mul_i32 s25, s58, 1792"); kl("s_add_u32 s24, s24, s25")
    kl("v_add_u32 v28, s24, v28"); kl("v_lshlrev_b32 v28, 11, v28")
    kl("s_lshl_b32 s24, s22, 8"); kl("v_add_u32 v28, s24, v28")
    kl("v_lshl_add_u32 v30, v29, 4, v28"); kl("v_xor_b32 v29, 8, v29"); kl("v_lshl_add_u32 v31, v29, 4, v28")
    for i in range(4):
        hi = (i >> 1) if G1 else (i & 1)
        kl(f"v_add_u32 v{VW[i]}, {i*(4*2048-1024)}, v{31 if hi else 30}")
    if G1:
        kl(f"v_lshrrev_b32 v28, 3, v{VL}"); kl(f"v_and_b32 v29, 7, v{VL}"); kl(f"v_lshrrev_b32 v30, 4, v{VL}"); kl("v_xor_b32 v29, v29, v30")
        kl("v_add_u32 v28, s35, v28"); kl("v_lshlrev_b32 v28, 11, v28")
        kl("v_lshl_add_u32 v30, v29, 4, v28"); kl("v_xor_b32 v29, 4, v29"); kl("v_lshl_add_u32 v31, v29, 4, v28")
        for i in range(4): kl(f"v_add_u32 v{LA[i]}, {i*(8*2048-1024)}, v{31 if i & 1 else 30}")
    kl("s_lshl_b32 s27, s20, 12")
    kl("s_waitcnt lgkmcnt(0)")
    srd(kl, 8, 28, 0, 3584 * 2048 if G4 else 2 * MB); srd(kl, 4, 32, 0, 4 * MB)
    def dma(s):
        kl(f"s_add_u32 m0, s27, {(s % NSLOT)*STG}"); kl("s_nop 0")
        for i in range(4):
            kl(f"buffer_load_dwordx4 v{VW[i]}, s[8:11], s47 offen offset:{1024*i} lds"); LD.vm.issue(("W", s))
        kl(f"s_add_u32 s47, s47, {64*2048}")
        if rot: kl(f"s_and_b32 s47, s47, {2*MB-1}")
        if G1:
            kl(f"s_add_u32 m0, s26, {(s % NSLOT)*4096}"); kl("s_nop 0")
            for i in range(4):
                kl(f"buffer_load_dwordx4 v{LA[i]}, s[4:7], s46 offen offset:{1024*i} lds"); LD.vm.issue(("W", s))
            kl("s_add_u32 s46, s46, 128")
            if rot: kl("s_and_b32 s46, s46, 2047")
    if G1: code_warm(kl, LD.vm, VL, KNAME, "code_end", 72, 20, 32, fwd=False)
    for s in range(PRE): dma(s)
    if G1:
        srd(kl, 16, 42, WS_AUX, AUX_SIZE); srd(kl, 36, 40, 0, 256)
        kl("v_mov_b32 v1, 0"); kl("v_and_b32 v12, 127, v0"); kl("v_lshlrev_b32 v12, 2, v12"); kl("s_lshl_b32 s24, s22, 9"); kl("v_add_u32 v13, s24, v12")
    else:
        kl("s_lshl_b32 s35, s22, 1") if G2 else kl("s_mov_b32 s35, s59")
        qtile_addr(kl, VL, 23, 35, 8, 9, 28)
        if G4:
            srd(kl, 36, 42, WS_Y, 4 * MB); srd(kl, 16, 42, WS_AUX, AUX_SIZE); kl("v_mov_b32 v1, 0")
            kl("s_lshl_b32 s45, s59, 7"); kl(f"s_add_u32 s45, s45, {FL(F_Y)}")
            kl(f"v_lshrrev_b32 v28, 2, v{VL}"); kl("s_lshl_b32 s24, s59, 6"); kl("v_add_u32 v28, s24, v28"); kl("v_lshlrev_b32 v28, 12, v28")
            kl(f"v_bfe_u32 v29, v{VL}, 4, 1"); kl("v_lshlrev_b32 v29, 1, v29"); kl(f"v_and_b32 v30, 3, v{VL}"); kl("v_xor_b32 v29, v29, v30")
            kl("v_lshl_add_u32 v28, v29, 4, v28"); kl("s_lshl_b32 s24, s23, 5"); kl("v_add_u32 v10, s24, v28")
    nxt = [PRE]
    CSL = TOP - 1024
    assert (2 * AL <= CSL) if G1 else (AL <= TOP - 32768)
    def loader_open(s):
        tags = [("W", s)] + (["X"] if s == NST - 1 and not G1 else [])
        LD.vm.wait(tags)
        if G1 and s == NST - 1: LD.lg.wait_all()
        kl("s_barrier")
        for _ in range(RAMP):
            if nxt[0] < NST and nxt[0] < max(s - 1, 0) + NSLOT: dma(nxt[0]); nxt[0] += 1
        if s == NST - 7: code_warm(kl, LD.vm, VL, f"{nm}_epi", f"{nm}_cwend", 72, 20, 24 if not G4 else 8, fwd=False, mask=31 if G4 else 15)
        if s == NST - 7 and not G4: code_warm(kl, LD.vm, VL, f"g{which+1}_l", f"g{which+2}_l", 76, 22, 4, mask=15)
        if G4 and s == NST - NSLOT - 2: kl("buffer_load_dword v2, v1, s[16:19], s45 offen sc1"); LD.vm.issue("F")
        if G1 and s == NST - 5: kl("buffer_load_dword v2, v1, s[36:39], 0 offen sc1"); LD.vm.issue("F")
        if G1 and s == NST - 3:
            spin_wait(kl, LD.vm, "F", 2, 1, 36, "0", 128)
            for i in range(16):
                kl(f"s_mov_b32 s44, {AUX_CS1 + 4096*i}"); kl(f"buffer_load_dword v{32+i}, v13, s[16:19], s44 offen sc1"); LD.vm.issue("C")
        if G1 and s == NST - 2:
            LD.vm.wait(["C"])
            for i in range(1, 16): kl(f"v_add_f32 v32, v32, v{32+i}")
            kl(f"v_add_u32 v12, {CSL}, v12"); kl("ds_write_b32 v12, v32"); LD.lg.issue("cw")
        if not G1 and s == NST - NSLOT + 1:
            for i in range(8 if G2 else 4):
                kl(f"s_add_u32 m0, s26, {i*1024}"); kl(f"s_mov_b32 s44, {(i%4)*8*2048 + (i//4)*128}")
                kl(f"buffer_load_dwordx4 v{8+i%2}, s[4:7], s44 offen lds"); LD.vm.issue("X")
            if G4:
                spin_wait(kl, LD.vm, "F", 2, 1, 16, "s45", 64)
                for i in range(4):
                    kl(f"s_add_u32 m0, s26, {4096+i*1024}"); kl(f"s_mov_b32 s44, {i*16*4096}")
                    kl("buffer_load_dwordx4 v10, s[36:39], s44 offen sc1 lds"); LD.vm.issue("X")
    GQ = []
    if not G1:
        aks = 112 if G4 else 32
        k(f"s_mul_i32 s24, s23, {aks*1024}")
        if G4: k(f"s_mul_i32 s25, s58, {56*1024}"); k("s_add_u32 s24, s24, s25")
        k(f"v_lshl_add_u32 v{VA[0]}, v{VL}, 4, s24"); k(f"v_add_u32 v{VA[1]}, {aks*1024}, v{VA[0]}")
    k("s_waitcnt lgkmcnt(0)")
    def load_a(s, h):
        for mt in range(2):
            k(f"buffer_load_dwordx4 {p4(AR+(s%RA)*16+8*h+4*mt)}, v{VA[mt]}, s[4:7], s46 offen offset:{1024*h} sc1"); vm.issue(("A", s, h))
        if h == 1:
            k("s_add_u32 s46, s46, 2048")
            if rot: k("s_and_b32 s46, s46, 32767")
    srd(k, 12, 42, WS_H if G1 else WS_X1, 4 * MB); srd(k, 16, 42, WS_AUX, AUX_SIZE)
    if G1:
        k(f"v_lshrrev_b32 v28, 4, v{VL}"); k("v_lshlrev_b32 v28, 3, v28"); k(f"v_bfe_u32 v29, v{VL}, 2, 2"); k("v_add_u32 v29, v28, v29")
    else:
        k(f"v_lshrrev_b32 v29, 2, v{VL}")
    k("v_lshlrev_b32 v29, 8, v29"); k(f"v_and_b32 v30, 3, v{VL}"); k("v_lshl_add_u32 v29, v30, 3, v29")
    k(f"v_bfe_u32 v28, v{VL}, 2, 3")
    if G4: k("s_lshl_b32 s24, s58, 2"); k("v_xor_b32 v28, s24, v28")
    for t in range(8):
        k(f"v_xor_b32 v30, {t}, v28"); k(f"v_lshl_add_u32 v{VR+t}, v30, 5, v29"); k(f"v_add_u32 v{VR2+t}, 65536, v{VR+t}")
    k("s_lshl_b32 s24, s23, 15"); k("s_lshl_b32 s25, s59, 11") if G4 else k("s_lshl_b32 s25, s22, 12"); k("s_add_u32 s24, s24, s25")
    k(f"v_lshl_add_u32 v{VX[0]}, v{VL}, 4, s24"); k(f"v_add_u32 v{VX[1]}, 32768, v{VX[0]}")
    k("v_mov_b32 v1, 0")
    if G1:
        srd(k, 36, 40, 0, 256); srd(k, 48, 42, WS_AUX + AUX_ST1, 16384)
        k(f"v_and_b32 v28, 15, v{VL}"); k("v_lshlrev_b32 v29, 7, v28"); k("v_add_u32 v29, s26, v29")
        k(f"v_add_u32 v{VS}, s35, v28"); k(f"v_add_u32 v{VS+1}, 16, v{VS}"); k(f"v_lshlrev_b32 v{VS}, 3, v{VS}"); k(f"v_lshlrev_b32 v{VS+1}, 3, v{VS+1}")
        k("v_lshrrev_b32 v28, 1, v28"); k(f"v_lshrrev_b32 v30, 4, v{VL}"); k("v_xor_b32 v28, v28, v30")
        k(f"v_lshl_add_u32 v{VAR}, v28, 4, v29"); k("v_xor_b32 v28, 4, v28"); k(f"v_lshl_add_u32 v{VAR+1}, v28, 4, v29")
    else:
        k(f"v_and_b32 v28, 15, v{VL}"); k("s_lshl_b32 s24, s23, 7"); k(f"v_lshl_add_u32 v{VS}, v28, 3, s24")
    if G4: srd(k, 48, 30, 0, 4 * MB); srd(k, 52, 42, WS_XCH, 8 * MB)
    if not G1:
        srd(k, 4, 42, WS_G3 if G4 else WS_H, 14 * MB if G4 else 4 * MB)
        k("s_lshr_b32 s24, s23, 1")
        if G4: k("s_lshl_b32 s24, s24, 1"); k("s_add_u32 s24, s24, s58")
        k("s_lshl_b32 s24, s24, 7"); k(f"s_add_u32 s24, s24, {FL(F_G if G4 else F_H)}")
        poll(k, 16, "s24", 8, 1, 2)
        D.stamp()
        for s in range(RA):
            tgt = (lambda f: f()) if s < APRE else GQ.append
            tgt(lambda s=s: load_a(s, 0)); tgt(lambda s=s: load_a(s, 1))
    STR = EP; XR = EP + 4
    def load_st():
        if G1:
            for mt in range(2):
                k(f"buffer_load_dwordx2 {p2(STR+2*mt)}, v{VS+mt}, s[48:51], 0 offen sc1"); vm.issue("S")
            return
        k(f"s_mov_b32 s44, {AUX_ST1}")
        for mt in range(2):
            k(f"buffer_load_dwordx2 {p2(STR+2*mt)}, v{VS}, s[16:19], s44 offen offset:{128*mt} sc1"); vm.issue("S")
        if G4:
            for mt in range(2):
                for p in range(2):
                    k(f"buffer_load_dwordx4 {p4(XR+8*mt+4*p)}, v{VX[mt]}, s[12:15], 0 offen offset:{1024*p} sc1"); vm.issue("S")
    G = [(s, ks, t) for s in range(NST - DEFER) for ks in range(2) for t in range(8)]
    for half in (1, 0):
        for s in range(NST - DEFER, NST):
            for ks in range(2): G += [(s, ks, 4 * half + t) for t in range(4)]
    n_send = len(G) - DEFER * 8
    last_use = {}
    for n, (s, ks, t) in enumerate(G): last_use[(s, ks)] = n
    opened = set(); seen = set()
    def rd(n):
        s, ks, t = G[n]
        if s not in opened:
            opened.add(s)
            k("s_barrier"); loader_open(s)
            if dbg == 2:
                kl("s_memtime s[80:81]"); kl("s_waitcnt lgkmcnt(0)"); kl(f"v_writelane_b32 v60, s80, {s}")
                if s == NST - 1:
                    srd(kl, 96, 42, WS_AUX + 2 * MB + (which % 4) * 262144, 262144)
                    kl("v_and_b32 v61, 255, v0"); kl("v_lshlrev_b32 v61, 2, v61"); kl("s_lshl_b32 s63, s2, 10"); kl("v_add_u32 v61, s63, v61")
                    kl("buffer_store_dword v60, v61, s[96:99], 0 offen")
            if G1:
                for kk in range(2):
                    for mt in range(2):
                        k(f"ds_read_b128 {p4(AR+(s%2)*16+8*kk+4*mt)}, v{VAR+kk} offset:{(s % NSLOT)*4096 + 2048*mt}"); lg.issue(("ra", s))
            if s == (NST - 2 if G1 else NST - 4): GQ.append(load_st)
        sl = s % NSLOT
        for u in range(2):
            ro = (32 * ks + (4 if G1 else 16) * u) * 256
            k(f"ds_read_b64_tr_b16 {p2(WF+4*(n%8)+2*u)}, v{(VR if sl < 4 else VR2)+t} offset:{(sl % 4)*STG + ro}"); lg.issue(("R", n))
    for n in range(7):
        rd(n)
        if n == 0 and G1: D.stamp()
    def send():
        k("s_lshl_b32 s24, s2, 2"); k("s_add_u32 s24, s24, s20")
        k("s_lshl_b32 s25, s24, 13"); k(f"v_lshl_add_u32 v28, v{VL}, 4, s25")
        k("s_xor_b32 s25, s25, 32768"); k(f"v_lshl_add_u32 v29, v{VL}, 4, s25")
        k("s_lshl_b32 s60, s24, 7"); k(f"s_add_u32 s60, s60, {FL(F_P)}")
        k("s_xor_b32 s24, s24, 4"); k("s_lshl_b32 s61, s24, 7"); k(f"s_add_u32 s61, s61, {FL(F_P)}")
        k("s_movk_i32 s44, 4096")
        for c in range(8):
            k(f"buffer_store_dwordx4 {p4(ACC+32+4*c)}, v28, s[52:55], {'0' if c < 4 else 's44'} offen offset:{1024*(c%4)} sc1"); vm.issue("P")
    for n, (s, ks, t) in enumerate(G):
        if G4 and n == n_send + 2:
            assert not GQ
            send()
        lg.wait([("R", n)])
        if not G1: vm.wait([("A", s, ks)])
        for mt in range(2):
            c = ACC + 8 * t + 4 * mt
            b = AR + (s % (2 if G1 else RA)) * 16 + 8 * ks + 4 * mt
            k(f"v_mfma_f32_16x16x32_bf16 {p4(c)}, {p4(WF+4*(n%8))}, {p4(b)}, {p4(c) if (t, mt) in seen else '0'}"); seen.add((t, mt))
            if mt == 0 and n + 7 < len(G): rd(n + 7)
        if GQ and n % 2: GQ.pop(0)()
        if not G1 and last_use[(s, ks)] == n and s + RA < NST: GQ.append(lambda s=s, ks=ks: load_a(s + RA, ks))
    assert not GQ
    k.label(f"{nm}_epi")
    if not G4: k("s_barrier"); kl("s_barrier")
    D.stamp()
    it = [(mt, h) for mt in range(2) for h in range(2)]
    if G1:
        k(f"v_lshrrev_b32 v4, 4, v{VL}"); k("v_lshlrev_b32 v4, 4, v4"); k(f"v_add_u32 v4, {CSL}, v4")
        CS = EP + 16; P = EP + 8; T = EP + 48; PK = EP + 64
        for t in range(8):
            k(f"ds_read_b128 {p4(CS+4*t)}, v4 offset:{64*t}"); lg.issue(("cs", t // 2))
        vm.wait(["S"])
        for mt in range(2):
            r1 = STR + 2 * mt + 1
            k(f"v_mul_f32 v28, v{r1}, v{r1}"); k(f"v_mul_f32 v28, {hx32(-1e-5)}, v28"); k(f"v_add_f32 v28, {hx32(1.0+1e-5)}, v28")
            k("v_rsq_f32 v28, v28"); k("s_nop 0"); k(f"v_mul_f32 v28, v28, v{r1}")
            gelu_consts(k, 28, STR + 2 * mt, P + 4 * mt, P + 4 * mt + 2, 29)
        for p in range(4):
            lg.wait([("cs", p)])
            items = [(ACC + 8 * (2 * p + j) + 4 * mt + 2 * h, CS + 4 * (2 * p + j) + 2 * h, P + 4 * mt, P + 4 * mt + 2)
                     for mt in range(2) for j in range(2) for h in range(2)]
            gelu_block(k, items, T)
            pk = PK + 8 * (p % 2)
            for i, x in enumerate(items): k(f"v_cvt_pk_bf16_f32 v{pk+i}, v{x[0]}, v{x[0]+1}")
            for mt in range(2): k(f"buffer_store_dwordx4 {p4(pk+4*mt)}, v{VX[mt]}, s[12:15], 0 offen offset:{1024*p}{ST}")
        D.stamp()
    elif G2:
        QR = WF; U = AR; PK = AR + 16; SS = 26; VQR = 8
        qtile_rd_addr(k, VL, 26, VQR, 28)
        for t in range(8):
            for mt in range(2):
                k(f"ds_read_b64 {p2(QR+4*t+2*mt)}, v{VQR+t%4} offset:{4096*(t//4)+2048*mt}"); lg.issue(("q", t))
        vm.wait(["S"])
        for mt in range(2):
            r = STR + 2 * mt
            k(f"v_mul_f32 v{r}, v{r}, v{r+1}"); k(f"v_sub_f32 v{r}, 0, v{r}")
        k("v_mov_b32 v16, 0x3f803f80")
        for i in range(4): k(f"v_mov_b32 v{SS+i}, 0")
        for t in range(8):
            lg.wait([("q", t)])
            uu = U + 8 * (t % 2)
            for mt, h in it: unpack(k, uu + 4 * mt + 2 * h, QR + 4 * t + 2 * mt + h)
            for mt, h in it:
                u = uu + 4 * mt + 2 * h; st = STR + 2 * mt
                k(f"v_pk_fma_f32 {p2(u)}, {p2(u)}, {p2(st)}, {p2(st)} op_sel:[0,1,0] op_sel_hi:[1,1,0]")
            for mt, h in it:
                c = ACC + 8 * t + 4 * mt + 2 * h
                k(f"v_pk_add_f32 {p2(c)}, {p2(c)}, {p2(uu+4*mt+2*h)}")
            for mt, h in it:
                c = ACC + 8 * t + 4 * mt + 2 * h
                k(f"v_cvt_pk_bf16_f32 v{PK+16*mt+4*(t//2)+2*(t%2)+h}, v{c}, v{c+1}")
            if t % 2 == 1:
                for mt in range(2):
                    k(f"buffer_store_dwordx4 {p4(PK+16*mt+4*(t//2))}, v{VX[mt]}, s[12:15], 0 offen offset:{1024*(t//2)}{ST}")
        for i in range(16):
            for mt in range(2):
                k(f"v_dot2_f32_bf16 v{SS+2*mt}, v{PK+16*mt+i}, v16, v{SS+2*mt}")
                k(f"v_dot2_f32_bf16 v{SS+2*mt+1}, v{PK+16*mt+i}, v{PK+16*mt+i}, v{SS+2*mt+1}")
        k("s_nop 3")
        k(f"v_permlane16_swap_b32 v{SS}, v{SS+1}"); k(f"v_permlane16_swap_b32 v{SS+2}, v{SS+3}"); k("s_nop 1")
        k(f"v_add_f32 v{SS}, v{SS}, v{SS+1}"); k(f"v_add_f32 v{SS+2}, v{SS+2}, v{SS+3}"); k("s_nop 1")
        k(f"v_permlane32_swap_b32 v{SS}, v{SS+2}"); k("s_nop 1")
        k(f"v_add_f32 v{SS}, v{SS}, v{SS+2}")
        k(f"v_lshrrev_b32 v16, 5, v{VL}"); k("v_lshlrev_b32 v16, 10, v16")
        k(f"v_and_b32 v17, 31, v{VL}"); k("v_lshl_add_u32 v16, v17, 4, v16")
        k("s_lshl_b32 s44, s23, 10"); k("s_lshr_b32 s45, s22, 2"); k("s_lshl_b32 s45, s45, 9"); k("s_add_u32 s44, s44, s45")
        k("s_and_b32 s45, s22, 3"); k("s_lshl_b32 s45, s45, 2"); k("s_add_u32 s44, s44, s45")
        k(f"buffer_store_dword v{SS}, v16, s[16:19], s44 offen{ST}")
        D.stamp()
    else:
        vm.wait_all()
        k(f"v_lshlrev_b32 v30, 22, v{VL}"); k("v_mov_b32 v31, 1")
        k("buffer_store_dword v31, v30, s[16:19], s60 offen sc1"); vm.issue("fl")
        k("buffer_load_dword v2, v1, s[16:19], s61 offen sc1"); vm.issue("F2")
        QR = WF; YR = WF + 16; UQ = AR; UU = AR + 32; TY = AR + 64; PR = ACC + 32; VQR = 8; VQ = [12, 13]
        qtile_rd_addr(k, VL, 26, VQR, 16)
        for t in range(4):
            for mt in range(2):
                k(f"ds_read_b64 {p2(QR+4*t+2*mt)}, v{VQR+t} offset:{2048*mt}"); lg.issue(("q", t))
        k(f"v_lshrrev_b32 v5, 2, v{VL}"); k("v_lshlrev_b32 v5, 6, v5")
        k(f"v_and_b32 v16, 3, v{VL}"); k("v_lshl_add_u32 v5, v16, 3, v5"); k("v_add_u32 v5, s26, v5")
        k(f"v_bfe_u32 v16, v{VL}, 4, 1")
        k("v_lshl_add_u32 v14, v16, 5, v5"); k("v_xor_b32 v16, 1, v16"); k("v_lshl_add_u32 v15, v16, 5, v5")
        for t in range(4):
            for mt in range(2):
                k(f"ds_read_b64_tr_b16 {p2(YR+4*t+2*mt)}, v{14+mt} offset:{4096+1024*t}"); lg.issue(("y", t))
        k(f"v_lshl_add_u32 v4, v{VL}, 4, s26")
        qtile_addr(k, VL, 23, 59, VQ[0], VQ[1], 16)
        for mt in range(2):
            r = STR + 2 * mt
            k(f"v_mul_f32 v{r}, v{r}, v{r+1}"); k(f"v_sub_f32 v{r}, 0, v{r}")
        for t in range(4):
            o = lambda mt, h: 8 * t + 4 * mt + 2 * h
            for mt, h in it: unpack(k, UU + o(mt, h), XR + 8 * mt + 4 * (t // 2) + 2 * (t % 2) + h)
            for mt, h in it: k(f"v_pk_add_f32 {p2(ACC+o(mt,h))}, {p2(ACC+o(mt,h))}, {p2(UU+o(mt,h))}")
        for t in range(4):
            o = lambda mt, h: 8 * t + 4 * mt + 2 * h
            lg.wait([("q", t), ("y", t)])
            for mt, h in it: unpack(k, UQ + o(mt, h), QR + 4 * t + 2 * mt + h)
            for mt, h in it: unpack(k, TY + 4 * mt + 2 * h, YR + 4 * t + 2 * mt + h)
            for mt, h in it:
                st = STR + 2 * mt
                k(f"v_pk_fma_f32 {p2(UU+o(mt,h))}, {p2(UQ+o(mt,h))}, {p2(st)}, {p2(st)} op_sel:[0,1,0] op_sel_hi:[1,1,0]")
            for mt, h in it: k(f"v_pk_mul_f32 {p2(UU+o(mt,h))}, {p2(UU+o(mt,h))}, {p2(TY+4*mt+2*h)}")
        k(f"s_mov_b32 s62, {hx32(-LOG2E)}"); k(f"s_mov_b32 s63, {hx32(-LOG2E)}")
        spin_wait(k, vm, "F2", 2, 1, 16, "s61", 1)
        for c in range(8):
            k(f"buffer_load_dwordx4 {p4(PR+4*c)}, v29, s[52:55], {'0' if c < 4 else 's44'} offen offset:{1024*(c%4)} sc1"); vm.issue(("PR", c // 2))
        D.stamp()
        T = WF
        for t in range(4):
            o = lambda mt, h: 8 * t + 4 * mt + 2 * h
            vm.wait([("PR", t)])
            for mt, h in it: k(f"v_pk_add_f32 {p2(ACC+o(mt,h))}, {p2(ACC+o(mt,h))}, {p2(PR+o(mt,h))}")
            for mt, h in it: k(f"v_pk_mul_f32 {p2(PR+o(mt,h))}, {p2(ACC+o(mt,h))}, s[62:63]")
            for i in range(8): k(f"v_exp_f32 v{PR+8*t+i}, v{PR+8*t+i}")
            for mt, h in it: k(f"v_pk_mul_f32 {p2(ACC+o(mt,h))}, {p2(ACC+o(mt,h))}, {p2(UU+o(mt,h))}")
            for mt, h in it: k(f"v_pk_add_f32 {p2(PR+o(mt,h))}, {p2(PR+o(mt,h))}, 1.0 op_sel_hi:[1,0]")
            for i in range(8): k(f"v_rcp_f32 v{PR+8*t+i}, v{PR+8*t+i}")
            k("s_nop 0")
            for mt, h in it: k(f"v_pk_fma_f32 {p2(ACC+o(mt,h))}, {p2(ACC+o(mt,h))}, {p2(PR+o(mt,h))}, {p2(UQ+o(mt,h))}")
            for mt, h in it: k(f"v_cvt_pk_bf16_f32 v{T+4*t+2*mt+h}, v{ACC+o(mt,h)}, v{ACC+o(mt,h)+1}")
            for mt in range(2):
                k(f"ds_write_b64 v{VQR+t}, {p2(T+4*t+2*mt)} offset:{2048*mt}"); lg.issue("o")
        for i in range(4):
            k(f"ds_read_b128 {p4(T+16+4*i)}, v4 offset:{1024*i}"); lg.issue(("ob", i))
        for i in range(4):
            lg.wait([("ob", i)])
            k(f"s_mov_b32 s44, {i*8*2048}")
            k(f"buffer_store_dwordx4 {p4(T+16+4*i)}, v{VQ[i%2]}, s[48:51], s44 offen")
    if not G4:
        k("s_lshr_b32 s24, s23, 1"); k("s_lshl_b32 s24, s24, 7"); k(f"s_add_u32 s24, s24, {FL(F_H if G1 else F_X)}")
        wave_publish(k, 16, "s24")
    D.flush(42)

def gemm3(k, kl, dbg, mapmode="4x8", NSLOT=5, RA=4, touch_at=12, PRE=2, RAMP=2):
    NST = 16; ROWB = 7168; STG = 64 * 448; FT = 14
    vm = Track(k, "vmcnt", 63); lg = Track(k, "lgkmcnt", 15); D = Dbg(k, dbg, 3)
    LD = Loader(kl); nm = "g3"; kc = k; k = Both(kc, kl)
    ACC = 16; WF = 128; AR = 184; VA = [1, 14]
    CS_LDS = TOP - 1024
    k(f"s_load_dwordx4 s[28:31], s[0:1], {ARG['w3']}")
    k(f"s_load_dwordx2 s[42:43], s[0:1], {ARG['ws']}")
    D.stamp()
    tile_map(k, mapmode, 21, 22, 24, 25)
    wave_lane(k, 20, VL, 2)
    k("s_lshl_b32 s23, s21, 3"); k("s_lshl_b32 s24, s20, 1"); k("s_add_u32 s23, s23, s24")
    k = kc
    VDMA = 16
    kl("s_mul_i32 s24, s20, 448"); kl("s_mul_i32 s25, s22, 448"); kl("s_movk_i32 s26, 2341")
    kl("s_mul_i32 s27, s20, 7168"); kl("s_mov_b32 s47, 0")
    kl("s_waitcnt lgkmcnt(0)")
    srd(kl, 8, 28, 0, 1024 * 7168)
    def dma1(s, i):
        if i % 4 == 0: kl(f"s_add_u32 m0, s27, {(s % NSLOT)*STG + (i//4)*4096}"); kl("s_nop 0")
        kl(f"buffer_load_dwordx4 v{VDMA+i}, s[8:11], s47 offen offset:{1024*(i%4)} lds"); LD.vm.issue(("W", s))
        if i == 6: kl(f"s_add_u32 s47, s47, {64*ROWB}")
    for i in range(7):
        kl(f"v_add_u32 v4, s24, v{VL}")
        if i: kl(f"v_add_u32 v4, {64*i}, v4")
        kl("v_mul_u32_u24 v5, s26, v4"); kl("v_lshrrev_b32 v5, 16, v5")
        kl("v_mul_u32_u24 v6, 28, v5"); kl("v_sub_u32 v6, v4, v6")
        kl("v_bfe_u32 v8, v5, 2, 1"); kl("v_lshlrev_b32 v8, 1, v8"); kl("v_xor_b32 v6, v6, v8")
        kl(f"v_mul_u32_u24 v5, {ROWB}, v5"); kl("v_lshl_add_u32 v5, v6, 4, v5")
        kl(f"v_add_u32 v{VDMA+i}, s25, v5")
        if i % 4: kl(f"v_subrev_u32 v{VDMA+i}, {1024*(i%4)}, v{VDMA+i}")
        dma1(0, i)
    def dma(s):
        for i in range(7): dma1(s, i)
    for s in range(1, PRE): dma(s)
    srd(kl, 16, 42, WS_AUX, AUX_SIZE); srd(kl, 36, 30, 0, 3584 * 2048)
    kl("v_and_b32 v9, 255, v0"); kl("v_lshlrev_b32 v9, 2, v9"); kl("s_mul_i32 s25, s22, 896"); kl("v_add_u32 v10, s25, v9"); kl(f"v_add_u32 v9, {CS_LDS}, v9")
    nxt = [PRE]
    def loader_open(s):
        LD.vm.wait([("W", s)])
        if s == NST - 1: LD.lg.wait_all()
        kl("s_barrier")
        for _ in range(RAMP):
            if nxt[0] < NST and nxt[0] < max(s - 1, 0) + NSLOT: dma(nxt[0]); nxt[0] += 1
        if s == 4: kl("v_mov_b32 v1, 0"); kl(f"s_mov_b32 s45, {FL(F_C3)}"); kl("buffer_load_dword v2, v1, s[16:19], s45 offen sc1"); LD.vm.issue("F")
        if s == 8:
            spin_wait(kl, LD.vm, "F", 2, 1, 16, "s45", 128)
            for i in range(8):
                kl(f"s_mov_b32 s26, {AUX_CS3 + i*14336}"); kl(f"buffer_load_dword v{32+i}, v10, s[16:19], s26 offen sc1"); LD.vm.issue("C")
        if s == 11:
            LD.vm.wait(["C"])
            for i in range(1, 8): kl(f"v_add_f32 v32, v32, v{32+i}")
            kl("ds_write_b32 v9, v32"); LD.lg.issue("cs")
        if s == NST - 6:
            code_warm(kl, LD.vm, VL, "g3_epi", "g3_cwend", 72, 12, 8, fwd=False); code_warm(kl, LD.vm, VL, "g4_l", "code_end", 76, 14, 2)
        if s == touch_at:
            kl("s_lshl_b32 s26, s20, 8"); kl("s_add_u32 s26, s26, s2"); kl("s_lshl_b32 s26, s26, 13"); kl(f"v_lshl_add_u32 v4, v{VL}, 7, s26")
            kl("buffer_load_dword v255, v4, s[36:39], 0 offen"); LD.vm.issue("t")
    GQ = []
    k("s_lshl_b32 s24, s23, 15"); k(f"v_lshl_add_u32 v{VA[0]}, v{VL}, 4, s24"); k(f"v_add_u32 v{VA[1]}, 32768, v{VA[0]}")
    k("s_lshl_b32 s24, s23, 10"); k(f"v_lshl_add_u32 v2, v{VL}, 4, s24")
    k("s_mov_b32 s46, 0")
    k("s_waitcnt lgkmcnt(0)")
    srd(k, 4, 42, WS_X1, 4 * MB); srd(k, 16, 42, WS_AUX, AUX_SIZE)
    def load_a(s, ks, mt):
        k(f"buffer_load_dwordx4 {p4(AR+(s%RA)*16+8*ks+4*mt)}, v{VA[mt]}, s[4:7], s46 offen offset:{1024*ks} sc1"); vm.issue(("A", s, ks))
        if ks == 1 and mt == 1: k("s_add_u32 s46, s46, 2048")
    srd(k, 12, 42, WS_G3, 14 * MB)
    k(f"v_lshrrev_b32 v4, 2, v{VL}"); k("v_mul_u32_u24 v4, 448, v4")
    k(f"v_and_b32 v5, 3, v{VL}"); k("v_lshl_add_u32 v4, v5, 3, v4")
    k(f"v_bfe_u32 v5, v{VL}, 4, 1"); k("v_lshlrev_b32 v5, 5, v5")
    k("v_add_u32 v8, v4, v5"); k("v_sub_u32 v9, v4, v5")
    RB = {(0, 0): 8, (0, 1): 9}
    for b in (1, 2):
        for par in range(2):
            RB[(b, par)] = 8 + 2 * b + par; k(f"v_add_u32 v{8+2*b+par}, {b*2*STG}, v{8+par}")
    k(f"v_lshrrev_b32 v15, 4, v{VL}"); k("v_lshlrev_b32 v15, 4, v15"); k(f"v_add_u32 v15, {CS_LDS}, v15")
    k("s_mul_i32 s24, s23, 114688"); k("s_mul_i32 s25, s22, 7168"); k("s_add_u32 s24, s24, s25")
    k(f"v_lshl_add_u32 v6, v{VL}, 4, s24"); k("v_add_u32 v7, 114688, v6")
    def rd_w(s, ks, t, u):
        slot = s % NSLOT
        off = (slot % 2) * STG + (32 * ks + 16 * u) * 448 + 32 * t
        k(f"ds_read_b64_tr_b16 {p2(WF+4*t+2*u)}, v{RB[(slot//2, t%2)]} offset:{off}"); lg.issue(("R", s, ks, t))
    k("s_lshr_b32 s24, s23, 1"); k("s_lshl_b32 s24, s24, 7"); k(f"s_add_u32 s24, s24, {FL(F_X)}"); k("v_mov_b32 v4, 0")
    poll(k, 16, "s24", 8, 4, 5)
    D.stamp()
    STR = 248
    for s in range(RA):
        for ks in range(2):
            for mt in range(2):
                if s < 2: load_a(s, ks, mt)
                else: GQ.append(lambda s=s, ks=ks, mt=mt: load_a(s, ks, mt))
        if s == 0:
            for mt in range(2):
                k(f"buffer_load_dwordx4 {p4(STR+4*mt)}, v2, s[16:19], 0 offen offset:{AUX_ST2+1024*mt} sc1"); vm.issue("ST")
    k("s_barrier"); loader_open(0)
    for t in range(FT):
        for u in range(2): rd_w(0, 0, t, u)
    for s in range(NST):
        for ks in range(2):
            last = (s == NST - 1 and ks == 1)
            ns, nk = (s, 1) if ks == 0 else (s + 1, 0)
            vm.wait([("A", s, ks)])
            for t in range(FT):
                if ks == 1 and t == 0 and s + 1 < NST:
                    k("s_barrier"); loader_open(s + 1)
                lg.wait([("R", s, ks, t)])
                for mt in range(2):
                    a = WF + 4 * t; b = AR + (s % RA) * 16 + 8 * ks + 4 * mt; c = ACC + 8 * t + 4 * mt
                    k(f"v_mfma_f32_16x16x32_bf16 {p4(c)}, {p4(a)}, {p4(b)}, {'0' if (s == 0 and ks == 0) else p4(c)}")
                    if t > 0 and not last: rd_w(ns, nk, t - 1, mt)
                if GQ and t % 3 == 1: GQ.pop(0)()
            if not last: rd_w(ns, nk, FT - 1, 0); rd_w(ns, nk, FT - 1, 1)
            if s + RA < NST:
                for mt in range(2): GQ.append(lambda s=s, ks=ks, mt=mt: load_a(s + RA, ks, mt))
    assert not GQ
    k.label(f"{nm}_epi")
    k("s_barrier"); kl("s_barrier")
    D.stamp()
    CS = WF; T = WF + 16; PK = AR; P = AR + 32
    def rd_cs(p):
        for h in range(2):
            k(f"ds_read_b128 {p4(CS+(p%2)*8+4*h)}, v15 offset:{128*p+64*h}"); lg.issue(("C", p))
    rd_cs(0)
    for mt in range(2):
        r = STR + 4 * mt
        for i in range(1, 4): k(f"v_add_f32 v{r}, v{r}, v{r+i}")
        k(f"v_mov_b32 v{r+1}, v{r}"); k("s_nop 1"); k(f"v_permlane32_swap_b32 v{r}, v{r+1}"); k("s_nop 1")
        k(f"v_add_f32 v{r}, v{r}, v{r+1}"); k(f"v_mov_b32 v{r+1}, v{r}"); k("s_nop 1")
        k(f"v_permlane16_swap_b32 v{r}, v{r+1}"); k("s_nop 1")
        k(f"v_mul_f32 v{r}, {hx32(1/1024)}, v{r}"); k(f"v_mul_f32 v{r+1}, {hx32(1/1024)}, v{r+1}")
        k(f"v_fma_f32 v{r+1}, -v{r}, v{r}, v{r+1}"); k(f"v_max_f32 v{r+1}, 0, v{r+1}"); k(f"v_add_f32 v{r+1}, {hx32(1e-5)}, v{r+1}")
        k(f"v_rsq_f32 v{r+1}, v{r+1}"); k("s_nop 0")
        gelu_consts(k, r + 1, r, P + 4 * mt, P + 4 * mt + 2, 4)
    for p in range(7):
        if p + 1 < 7: rd_cs(p + 1)
        lg.wait([("C", p)])
        items = [(ACC + 8 * (2 * p + j) + 4 * mt + 2 * h, CS + (p % 2) * 8 + 4 * j + 2 * h, P + 4 * mt, P + 4 * mt + 2)
                 for mt in range(2) for j in range(2) for h in range(2)]
        gelu_block(k, items, T)
        pk = PK + (p % 2) * 8
        for i, x in enumerate(items): k(f"v_cvt_pk_bf16_f32 v{pk+i}, v{x[0]}, v{x[0]+1}")
        k(f"s_mov_b32 s26, {1024*p}")
        for mt in range(2): k(f"buffer_store_dwordx4 {p4(pk+4*mt)}, v{6+mt}, s[12:15], s26 offen{ST}")
    D.stamp()
    k("s_lshr_b32 s24, s23, 1"); k("s_lshl_b32 s24, s24, 1"); k("s_lshr_b32 s25, s22, 3"); k("s_add_u32 s24, s24, s25")
    k("s_lshl_b32 s24, s24, 7"); k(f"s_add_u32 s24, s24, {FL(F_G)}")
    wave_publish(k, 16, "s24", 4)
    D.flush(42)

KNAME = "recurrent_scan__ssm_conv_h3__mixer_s_mlp__prompt_kernel"
def build(path, dbg=False, opts=None):
    o = dict(map3="4x8", k1=dict(RAMP=1, PRE=4), k2=dict(RAMP=1, PRE=6), k3=dict(RAMP=1, PRE=4), k4=dict(RAMP=1, PRE=6, APRE=3))
    for kk, vv in (opts or {}).items():
        if isinstance(vv, dict) and kk in o: o[kk] = {**o[kk], **vv}
        else: o[kk] = vv
    OPT.clear(); OPT.update(o)
    k = Kern(KNAME, vgpr=256); ks = Kern("sd"); kc = Kern("gc"); kl = Kern("gl")
    k("s_cmp_ge_u32 s2, 256"); k("s_cbranch_scc1 L_end")
    k("s_cmp_ge_u32 s2, 128"); k("s_cbranch_scc0 s1_c")
    k("v_lshrrev_b32 v2, 8, v0"); k("s_nop 0"); k("v_readfirstlane_b32 s3, v2"); k("s_nop 0"); k("s_cmp_eq_u32 s3, 1"); k("s_cbranch_scc1 g1_l"); k("s_branch g1_c")
    k.label("L_end"); k("s_endpgm")
    ks.label("s1_c"); side1(ks, dbg, None); side2(ks, dbg, None, **o.get("s2", {}))
    ks("s_cmp_eq_u32 s3, 1"); ks("s_cbranch_scc1 g3_l"); ks("s_branch g3_c")
    for w in (1, 2, 3, 4):
        kc.label(f"g{w}_c"); kl.label(f"g{w}_l")
        if w == 3: gemm3(kc, kl, dbg, o["map3"], **o["k3"])
        else: gemm128(kc, kl, w, dbg, **o[f"k{w}"])
        if w > 1: pass
    kc("s_endpgm"); kl("s_endpgm")
    for w in (1, 2, 3):
        i = kc.L.index(f"g{w+1}_epi:"); kc.L.insert(i, f"g{w}_cwend:")
    kc.label("g4_cwend")
    k.L += ks.L + kc.L + kl.L
    k.label("code_end")
    hdr = "".join(l for l in open("ref_hdr.s").readlines()[:15])
    launches = [(KNAME, 256, 512, TOP)]
    emit_file(path, hdr, launches, [k])
    return launches
STAMPS = [("k1side",1,0,128),("k1",1,128,256),("k2side",2,0,128),("k2",2,128,256),("k3",3,0,256),("k4",4,0,256)]
if __name__ == "__main__":
    print(build(sys.argv[1] if len(sys.argv) > 1 else "full.s", dbg=(len(sys.argv) > 2)))
```
